```python
import torch

def _softmax(x, axis=-1):
    return torch.softmax(x, dim=axis)
def _gelu(x):
    return torch.nn.functional.gelu(x, approximate="tanh")
def _silu(x):
    return torch.nn.functional.silu(x)
def _sigmoid(x):
    return torch.sigmoid(x)
def _layernorm(x, axis=-1, eps=1e-5):
    m = x.mean(dim=axis, keepdim=True)
    v = x.var(dim=axis, keepdim=True, unbiased=False)
    return (x - m) / torch.sqrt(v + eps)
def _scatter_add(tgt, idx, src, axis=0):
    return tgt.clone().index_add_(axis, idx, src)
def _segment_sum(src, seg, n):
    out = torch.zeros((n,) + src.shape[1:], dtype=src.dtype)
    return out.index_add_(0, seg, src)
def _pad(x, pw):
    flat = tuple(v for pair in reversed(pw) for v in pair)
    return torch.nn.functional.pad(x, flat)

kernel_name = 'sequential_preLN__softmax_full_mha__geglu_ffn__prompt'

def setup_inputs():

    _w = (lambda a: (lambda t: t.to(torch.bfloat16) if t.is_floating_point() else t)(torch.as_tensor(a)))
    def _A_setup():
        B, S, D = 1, 2048, 448
        return {
            "x": _w((lambda *s: torch.randn(*s, dtype=torch.bfloat16) * 0.05)(B, S, D)),
            "wqkv": _w((lambda *s: torch.randn(*s, dtype=torch.bfloat16) * 0.05)(D, 3 * D)),
            "wo": _w((lambda *s: torch.randn(*s, dtype=torch.bfloat16) * 0.05)(D, D)),
        }
    _A_in = _A_setup()

    def _B_setup():
        B, S, D, F = 1, 2048, 448, 1792
        return {
            "x": _w((lambda *s: torch.randn(*s, dtype=torch.bfloat16) * 0.05)(B, S, D)),
            "w_gate": _w((lambda *s: torch.randn(*s, dtype=torch.bfloat16) * 0.05)(D, F)),
            "w_up": _w((lambda *s: torch.randn(*s, dtype=torch.bfloat16) * 0.05)(D, F)),
            "w_down": _w((lambda *s: torch.randn(*s, dtype=torch.bfloat16) * 0.05)(F, D)),
        }
    _B_in = _B_setup()

    return {
        "A_x": _A_in["x"],
        "A_wqkv": _A_in["wqkv"],
        "A_wo": _A_in["wo"],
        "B_x": _B_in["x"],
        "B_w_gate": _B_in["w_gate"],
        "B_w_up": _B_in["w_up"],
        "B_w_down": _B_in["w_down"],
    }

def reference(A_x, A_wqkv, A_wo, B_x, B_w_gate, B_w_up, B_w_down):
    def _A_ref(x, wqkv, wo):
        B, S, D = x.shape
        H = 16; Dh = D // H
        qkv = (lambda x, *d: x.permute(*d))((x @ wqkv).reshape(B, S, 3, H, Dh), 2, 0, 3, 1, 4)
        q, k, v = qkv[0], qkv[1], qkv[2]
        scale = Dh ** -0.5
        scores = torch.einsum("bhqd,bhkd->bhqk", q, k) * scale
        p = _softmax(scores, axis=-1)
        o = torch.einsum("bhqk,bhkd->bhqd", p, v)
        return (lambda x, *d: x.permute(*d))(o, 0, 2, 1, 3).reshape(B, S, D) @ wo

    def _B_ref(x, w_gate, w_up, w_down):
        return (_gelu(x @ w_gate) * (x @ w_up)) @ w_down

    x = A_x
    h = x + _A_ref(_layernorm(x, axis=-1), A_wqkv, A_wo)
    h2 = h + _B_ref(_layernorm(h, axis=-1), B_w_gate, B_w_up, B_w_down)
    return h2
```

```python
import sys, math, struct

NAME = "sequential_preLN__softmax_full_mha__geglu_ffn__prompt"
MB = 1 << 20
WS_QF, WS_KF, WS_VF, WS_OF, WS_H, WS_AF = 0, 2 * MB, 4 * MB, 6 * MB, 8 * MB, 12 * MB
FRAG_BYTES = 2 * MB
H_BYTES = 2048 * 896
AF_BYTES = 64 * 112 * 1024
X_BYTES = 2048 * 896
WQKV_BYTES = 448 * 2688
WO_BYTES = 448 * 896
WG_BYTES = 448 * 3584
WD_BYTES = 1792 * 896


def f2u(x):
    return struct.unpack("<I", struct.pack("<f", x))[0]


class Asm:
    def __init__(self):
        self.L = []

    def __call__(self, s):
        for line in s.strip("\n").split("\n"):
            self.L.append("    " + line.strip())

    def label(self, s):
        self.L.append(s + ":")

    def text(self):
        return "\n".join(self.L) + "\n"


def vr(b, n):
    return f"v[{b}:{b + n - 1}]"


def sr(b, n):
    return f"s[{b}:{b + n - 1}]"


def srd(a, dst, ptr, off, size):
    if off:
        a(f"s_add_u32 s{dst}, s{ptr}, 0x{off:x}")
        a(f"s_addc_u32 s{dst + 1}, s{ptr + 1}, 0")
    else:
        a(f"s_mov_b32 s{dst}, s{ptr}")
        a(f"s_mov_b32 s{dst + 1}, s{ptr + 1}")
    a(f"s_mov_b32 s{dst + 2}, 0x{size:x}")
    a(f"s_mov_b32 s{dst + 3}, 0x00020000")


def mfma(d, A, B, C):
    c = C if isinstance(C, str) else vr(C, 16)
    return f"v_mfma_f32_32x32x16_bf16 {vr(d, 16)}, {vr(A, 4)}, {vr(B, 4)}, {c}"


def header(a, kname):
    a.L.append(f".globl {kname}")
    a.L.append(".p2align 8")
    a.L.append(f".type {kname},@function")
    a.L.append(f"{kname}:")


def descriptor(kname, vgpr, sgpr=96):
    v = (vgpr + 7) // 8 * 8
    return f""".amdhsa_kernel {kname}
  .amdhsa_next_free_vgpr {v}
  .amdhsa_next_free_sgpr {sgpr}
  .amdhsa_accum_offset {v}
  .amdhsa_group_segment_fixed_size 0
  .amdhsa_kernarg_size 80
  .amdhsa_user_sgpr_count 2
  .amdhsa_user_sgpr_kernarg_segment_ptr 1
  .amdhsa_system_sgpr_workgroup_id_x 1
.end_amdhsa_kernel
"""


def ln_issue(a, srd_s, soff_s, R, T):
    a(f"v_lshrrev_b32 v{T}, 2, v0")
    a(f"v_and_b32 v{T + 1}, 3, v0")
    a(f"v_mul_u32_u24 v{T + 2}, 0x380, v{T}")
    a(f"v_lshl_add_u32 v{T + 3}, v{T + 1}, 4, v{T + 2}")
    for i in range(14):
        a(f"buffer_load_dwordx4 {vr(R + 4 * i, 4)}, v{T + 3}, {sr(srd_s, 4)}, s{soff_s} offen offset:{64 * i}")


def ln_compute(a, R, Fb, T, lds_base, later_vm):
    row, p, rowoff = T, T + 1, T + 2
    A0, A1 = T + 4, T + 6
    assert A0 % 2 == 0 and Fb % 2 == 0
    a(f"v_mov_b32 v{A0}, 0\nv_mov_b32 v{A0 + 1}, 0\nv_mov_b32 v{A1}, 0\nv_mov_b32 v{A1 + 1}, 0")
    for i in range(14):
        a(f"s_waitcnt vmcnt({min(63, later_vm + 13 - i)})")
        for j in range(4):
            a(f"v_lshlrev_b32 v{Fb + 8 * i + 2 * j}, 16, v{R + 4 * i + j}")
            a(f"v_and_b32 v{Fb + 8 * i + 2 * j + 1}, 0xffff0000, v{R + 4 * i + j}")
        for j in range(4):
            acc = A0 if j % 2 == 0 else A1
            a(f"v_pk_add_f32 {vr(acc, 2)}, {vr(acc, 2)}, {vr(Fb + 8 * i + 2 * j, 2)}")
    S = T + 8
    a(f"v_pk_add_f32 {vr(A0, 2)}, {vr(A0, 2)}, {vr(A1, 2)}")
    a(f"v_add_f32 v{S}, v{A0}, v{A0 + 1}")
    a("s_nop 1")
    a(f"v_add_f32_dpp v{S}, v{S}, v{S} quad_perm:[1,0,3,2] row_mask:0xf bank_mask:0xf")
    a("s_nop 1")
    a(f"v_add_f32_dpp v{S}, v{S}, v{S} quad_perm:[2,3,0,1] row_mask:0xf bank_mask:0xf")
    M = T + 10
    a(f"v_mul_f32 v{M}, 0x{f2u(-1.0 / 448.0):08x}, v{S}")
    a(f"v_mov_b32 v{M + 1}, v{M}")
    a(f"v_mov_b32 v{A0}, 0\nv_mov_b32 v{A0 + 1}, 0\nv_mov_b32 v{A1}, 0\nv_mov_b32 v{A1 + 1}, 0")
    for t in range(56):
        a(f"v_pk_add_f32 {vr(Fb + 2 * t, 2)}, {vr(Fb + 2 * t, 2)}, {vr(M, 2)}")
    for t in range(56):
        acc = A0 if t % 2 == 0 else A1
        a(f"v_pk_fma_f32 {vr(acc, 2)}, {vr(Fb + 2 * t, 2)}, {vr(Fb + 2 * t, 2)}, {vr(acc, 2)}")
    a(f"v_pk_add_f32 {vr(A0, 2)}, {vr(A0, 2)}, {vr(A1, 2)}")
    a(f"v_add_f32 v{S}, v{A0}, v{A0 + 1}")
    a("s_nop 1")
    a(f"v_add_f32_dpp v{S}, v{S}, v{S} quad_perm:[1,0,3,2] row_mask:0xf bank_mask:0xf")
    a("s_nop 1")
    a(f"v_add_f32_dpp v{S}, v{S}, v{S} quad_perm:[2,3,0,1] row_mask:0xf bank_mask:0xf")
    a(f"v_mov_b32 v{M + 1}, 0x{f2u(1e-5):08x}")
    a(f"v_fmac_f32 v{M + 1}, 0x{f2u(1.0 / 448.0):08x}, v{S}")
    a(f"v_rsq_f32 v{M}, v{M + 1}")
    a("s_nop 0")
    a(f"v_mov_b32 v{M + 1}, v{M}")
    a(f"v_lshrrev_b32 v{S}, 1, v{row}")
    a(f"v_and_b32 v{S}, 7, v{S}")
    a(f"v_xor_b32 v{S}, v{S}, v{p}")
    a(f"v_lshl_add_u32 v{S}, v{S}, 4, v{rowoff}")
    a(f"v_add_u32 v{S}, 0x{lds_base:x}, v{S}")
    a(f"v_xor_b32 v{S + 1}, 64, v{S}")
    for i in range(14):
        for j in range(4):
            a(f"v_pk_mul_f32 {vr(Fb + 8 * i + 2 * j, 2)}, {vr(Fb + 8 * i + 2 * j, 2)}, {vr(M, 2)}")
        for j in range(4):
            a(f"v_cvt_pk_bf16_f32 v{R + 4 * i + j}, v{Fb + 8 * i + 2 * j}, v{Fb + 8 * i + 2 * j + 1}")
        a(f"ds_write_b128 v{S + (i & 1)}, {vr(R + 4 * i, 4)} offset:{(i >> 1) * 128}")


def a_frag_addr(a, dst, lane, T, lds_base):
    a(f"v_and_b32 v{T}, 31, v{lane}")
    a(f"v_lshrrev_b32 v{T + 1}, 5, v{lane}")
    a(f"v_lshrrev_b32 v{T + 2}, 1, v{T}")
    a(f"v_and_b32 v{T + 2}, 7, v{T + 2}")
    a(f"v_xor_b32 v{T + 1}, v{T + 1}, v{T + 2}")
    a(f"v_mul_u32_u24 v{T}, 0x380, v{T}")
    a(f"v_lshl_add_u32 v{dst}, v{T + 1}, 4, v{T}")
    a(f"v_add_u32 v{dst}, 0x{lds_base:x}, v{dst}")
    for j in range(1, 4):
        a(f"v_xor_b32 v{dst + j}, {32 * j}, v{dst}")


def k1():
    kn = "k1_qkv_kernel"
    a = Asm()
    header(a, kn)
    NSLOT, STAGE = 5, 12288
    ALDS = NSLOT * STAGE
    LDS = ALDS + 64 * 896
    a("s_cmp_ge_u32 s2, 256")
    a("s_cbranch_scc1 K1_END")
    a("s_load_dwordx2 s[4:5], s[0:1], 0")
    a("s_load_dwordx2 s[6:7], s[0:1], 8")
    a("s_load_dwordx2 s[8:9], s[0:1], 72")
    a("s_lshr_b32 s20, s2, 3")
    a("s_and_b32 s21, s2, 7")
    a("v_lshrrev_b32 v1, 6, v0")
    a("v_and_b32 v2, 63, v0")
    a("s_nop 0")
    a("v_readfirstlane_b32 s22, v1")
    a("s_waitcnt lgkmcnt(0)")
    srd(a, 12, 4, 0, X_BYTES)
    srd(a, 16, 6, 0, WQKV_BYTES)
    srd(a, 64, 8, 0, 6 * MB)
    a("s_mul_i32 s23, s20, 0xe000")
    R, Fb, T = 116, 4, 172
    ln_issue(a, 12, 23, R, T)
    D = 184
    a(f"v_lshrrev_b32 v{D}, 3, v2")
    a(f"v_lshl_add_u32 v{D}, v1, 3, v{D}")
    a(f"v_mul_u32_u24 v{D}, 0xa80, v{D}")
    a(f"v_lshrrev_b32 v{D + 1}, 4, v2")
    a(f"v_and_b32 v{D + 1}, 1, v{D + 1}")
    a(f"v_lshlrev_b32 v{D + 1}, 2, v{D + 1}")
    a(f"v_and_b32 v{D + 2}, 7, v2")
    a(f"v_xor_b32 v{D + 1}, v{D + 1}, v{D + 2}")
    a(f"v_lshl_add_u32 v{D}, v{D + 1}, 4, v{D}")
    a("s_mul_i32 s26, s21, 112")
    a(f"v_add_u32 v{D}, s26, v{D}")
    a("s_lshl_b32 s27, s22, 10")

    def dma_stage(s):
        slot = s % NSLOT
        for sec in range(3):
            a(f"s_add_u32 m0, s27, {slot * STAGE + sec * 4096}")
            a(f"s_mov_b32 s28, 0x{s * 32 * 2688 + sec * 896:x}")
            a(f"buffer_load_dwordx4 v{D}, s[16:19], s28 offen lds")

    PRE = 4
    for s in range(PRE):
        dma_stage(s)
    ln_compute(a, R, Fb, T, ALDS, PRE * 3)
    XA = 4
    a_frag_addr(a, XA, 2, 10, ALDS)
    a("s_and_b32 s29, s22, 1")
    a("s_mul_i32 s29, s29, 0x7000")
    for j in range(4):
        a(f"v_add_u32 v{XA + j}, s29, v{XA + j}")
    WA = 8
    a("v_lshrrev_b32 v10, 4, v2")
    a("v_and_b32 v11, 1, v10")
    a("v_lshrrev_b32 v12, 1, v10")
    a("v_lshrrev_b32 v13, 2, v2")
    a("v_and_b32 v13, 3, v13")
    a("v_and_b32 v14, 3, v2")
    a("v_lshlrev_b32 v15, 5, v11")
    a("v_lshl_add_u32 v15, v14, 3, v15")
    a("s_lshr_b32 s30, s22, 1")
    a("s_mul_i32 s30, s30, 56")
    a("v_add_u32 v15, s30, v15")
    a("v_lshrrev_b32 v16, 1, v13")
    a("v_lshlrev_b32 v16, 6, v16")
    a("v_xor_b32 v15, v16, v15")
    a("v_lshl_add_u32 v17, v12, 3, v13")
    a(f"v_lshl_add_u32 v{WA}, v17, 7, v15")
    AQ, AK, AV = 20, 36, 52
    XF = 68
    WF = 76
    first = True
    for s in range(14):
        outstanding = min(13, s + PRE - 1) - s
        a(f"s_waitcnt vmcnt({outstanding * 3}) lgkmcnt(0)")
        a("s_barrier")
        if s + PRE < 14:
            dma_stage(s + PRE)
        slot = s % NSLOT
        for kk in range(2):
            ks = 2 * s + kk
            a(f"ds_read_b128 {vr(XF + 4 * kk, 4)}, v{XA + (ks & 3)} offset:{(ks >> 2) * 128}")
            for sec in range(3):
                off = slot * STAGE + sec * 4096 + kk * 2048
                a(f"ds_read_b64_tr_b16 {vr(WF + 12 * kk + 4 * sec, 2)}, v{WA} offset:{off}")
                a(f"ds_read_b64_tr_b16 {vr(WF + 12 * kk + 4 * sec + 2, 2)}, v{WA} offset:{off + 512}")
        for kk in range(2):
            a(f"s_waitcnt lgkmcnt({7 if kk == 0 else 0})")
            w = WF + 12 * kk
            x = XF + 4 * kk
            a(mfma(AQ, w, x, "0" if first else AQ))
            a(mfma(AK, w + 4, x, "0" if first else AK))
            a(mfma(AV, x, w + 8, "0" if first else AV))
            first = False
    a("s_nop 15\ns_nop 7")
    a("s_mov_b32 s32, 0\ns_mov_b32 s33, -1")
    a("s_mov_b32 s34, 0xf0000000\ns_mov_b32 s35, 0xf0000000")
    a("v_and_b32 v10, 31, v2")
    a("v_mov_b32 v11, 0x3f803f80")
    a("v_cmp_eq_u32 vcc, 28, v10")
    a("s_nop 1")
    a("v_cndmask_b32 v11, 0, v11, vcc")
    qs = 28.0 ** -0.5 * math.log2(math.e)
    a(f"s_mov_b32 s36, 0x{f2u(qs):08x}")
    for i in range(16):
        a(f"v_mul_f32 v{AQ + i}, s36, v{AQ + i}")
    for (acc, dst) in ((AQ, 68), (AK, 76), (AV, 84)):
        for i in range(8):
            a(f"v_cvt_pk_bf16_f32 v{dst + i}, v{acc + 2 * i}, v{acc + 2 * i + 1}")
    for dst in (68, 76):
        a(f"v_cndmask_b32_e64 v{dst + 6}, v{dst + 6}, 0, s[32:33]")
        a(f"v_cndmask_b32_e64 v{dst + 7}, v{dst + 7}, 0, s[32:33]")
    for i in range(8):
        a(f"v_cndmask_b32_e64 v{84 + i}, v{84 + i}, v11, s[34:35]")
    a("s_lshr_b32 s30, s22, 1")
    a("s_lshl_b32 s31, s21, 1")
    a("s_add_u32 s30, s30, s31")
    a("s_lshl_b32 s30, s30, 6")
    a("s_lshl_b32 s31, s20, 1")
    a("s_add_u32 s30, s30, s31")
    a("s_and_b32 s31, s22, 1")
    a("s_add_u32 s30, s30, s31")
    a("s_lshl_b32 s30, s30, 11")
    a("v_lshlrev_b32 v10, 4, v2")
    for k, dst in enumerate((68, 76, 84)):
        a(f"s_add_u32 s31, s30, 0x{k * 2 * MB:x}")
        a(f"buffer_store_dwordx4 {vr(dst, 4)}, v10, s[64:67], s31 offen")
        a(f"buffer_store_dwordx4 {vr(dst + 4, 4)}, v10, s[64:67], s31 offen offset:1024")
    a("s_waitcnt vmcnt(0)")
    a.label("K1_END")
    a("s_endpgm")
    return kn, a.text(), descriptor(kn, 192), f"grid=(256,1,1) block=(256,1,1) lds={LDS}"


def k2():
    kn = "k2_attn_kernel"
    a = Asm()
    header(a, kn)
    NSLOT, STAGE = 4, 16384
    LDS = NSLOT * STAGE
    THR = 16.0
    a("s_cmp_ge_u32 s2, 256")
    a("s_cbranch_scc1 K2_END")
    a("s_load_dwordx2 s[8:9], s[0:1], 72")
    a("s_and_b32 s20, s2, 15")
    a("s_lshr_b32 s21, s2, 4")
    a("v_lshrrev_b32 v1, 6, v0")
    a("v_and_b32 v2, 63, v0")
    a("s_nop 0")
    a("v_readfirstlane_b32 s22, v1")
    a("s_waitcnt lgkmcnt(0)")
    srd(a, 12, 8, 0, 6 * MB)
    srd(a, 16, 8, WS_OF, FRAG_BYTES)
    a("s_and_b32 s23, s22, 3")
    a("s_lshr_b32 s24, s22, 2")
    a("v_lshlrev_b32 v3, 4, v2")
    Q = 4
    a("s_lshl_b32 s25, s20, 6")
    a("s_lshl_b32 s26, s21, 2")
    a("s_add_u32 s25, s25, s26")
    a("s_add_u32 s25, s25, s23")
    a("s_lshl_b32 s25, s25, 11")
    a(f"buffer_load_dwordx4 {vr(Q, 4)}, v3, s[12:15], s25 offen")
    a(f"buffer_load_dwordx4 {vr(Q + 4, 4)}, v3, s[12:15], s25 offen offset:1024")
    a("s_lshl_b32 s27, s20, 6")
    a("s_lshl_b32 s28, s24, 5")
    a("s_add_u32 s27, s27, s28")
    a("s_lshl_b32 s27, s27, 11")
    a("s_lshl_b32 s28, s23, 10")
    a("s_add_u32 s27, s27, s28")
    a(f"s_add_u32 s27, s27, 0x{WS_KF:x}")
    a(f"s_add_u32 s29, s27, 0x{2 * MB:x}")
    a("s_lshl_b32 s30, s24, 13")
    a("s_add_u32 s30, s30, s28")

    def dma(slot):
        a(f"s_add_u32 m0, s30, {slot * STAGE}")
        a("s_nop 0")
        a("buffer_load_dwordx4 v3, s[12:15], s27 offen lds")
        a(f"s_add_u32 m0, s30, {slot * STAGE + 4096}")
        a("s_add_u32 s27, s27, 4096")
        a("buffer_load_dwordx4 v3, s[12:15], s29 offen lds")
        a("s_add_u32 s29, s29, 4096")

    PRE = 3
    for s in range(PRE):
        dma(s)
    a("s_lshl_b32 s31, s24, 13")
    a("v_add_u32 v12, s31, v3")
    RA = 12
    NEG = 16
    O = 32
    S = 48
    P = 64
    KV = 72
    MX, T0, T1, MREF = 104, 105, 106, 107
    a(f"s_mov_b32 s36, 0x{f2u(THR):08x}")
    for i in range(16):
        a(f"v_mov_b32 v{O + i}, 0")
        a(f"v_mov_b32 v{NEG + i}, 0")
    a(f"v_mov_b32 v{MREF}, 0")
    a("s_mov_b32 s40, 0")

    resc_blocks = []

    def tile(tt, slot, first, tag):
        kv = KV + 16 * tt
        a(mfma(S, kv, Q, NEG))
        a(mfma(S, kv + 4, Q + 4, S))
        a("s_nop 15\ns_nop 3")
        a(f"v_max3_f32 v{MX}, v{S}, v{S + 1}, v{S + 2}")
        for i in range(3, 15, 2):
            a(f"v_max3_f32 v{MX}, v{MX}, v{S + i}, v{S + i + 1}")
        a(f"v_max_f32 v{MX}, v{MX}, v{S + 15}")
        if first:
            a(f"s_branch K2_R{tag}")
        else:
            a(f"v_cmp_lt_f32 vcc, s36, v{MX}")
            a("s_nop 0")
            a(f"s_cbranch_vccnz K2_R{tag}")
        a.label(f"K2_B{tag}")
        for i in range(16):
            a(f"v_exp_f32 v{S + i}, v{S + i}")
        a("s_nop 0")
        for i in range(8):
            a(f"v_cvt_pk_bf16_f32 v{P + i}, v{S + 2 * i}, v{S + 2 * i + 1}")
        a("s_nop 1")
        a(mfma(O, kv + 8, P, O))
        a(mfma(O, kv + 12, P + 4, O))
        resc_blocks.append((tag, first))

    def stage_body(slot, first, tag, wait_n, do_dma):
        a(f"s_waitcnt vmcnt({wait_n})")
        a("s_barrier")
        if do_dma:
            dma((slot + PRE) % NSLOT)
        for tt in range(2):
            for j in range(2):
                a(f"ds_read_b128 {vr(KV + 16 * tt + 4 * j, 4)}, v{RA} offset:{slot * STAGE + tt * 2048 + j * 1024}")
            for j in range(2):
                a(f"ds_read_b128 {vr(KV + 16 * tt + 8 + 4 * j, 4)}, v{RA} offset:{slot * STAGE + 4096 + tt * 2048 + j * 1024}")
        a("s_waitcnt lgkmcnt(4)")
        tile(0, slot, first, tag + "a")
        a("s_waitcnt lgkmcnt(0)")
        tile(1, slot, False, tag + "b")

    for s in range(4):
        stage_body(s, s == 0, f"p{s}", 2 * (PRE - 1), True)
    a.label("K2_LOOP")
    for s in range(4):
        stage_body(s, False, f"l{s}", 2 * (PRE - 1), True)
    a("s_add_u32 s40, s40, 1")
    a("s_cmp_lt_u32 s40, 2")
    a("s_cbranch_scc1 K2_LOOP")
    stage_body(0, False, "t0", 2 * (PRE - 1), True)
    stage_body(1, False, "t1", 4, False)
    stage_body(2, False, "t2", 2, False)
    stage_body(3, False, "t3", 0, False)
    a("s_branch K2_FIN")
    for tag, first in resc_blocks:
        a.label(f"K2_R{tag}")
        a(f"v_mov_b32 v{T0}, v{MX}")
        a(f"v_mov_b32 v{T1}, v{MX}")
        a("s_nop 1")
        a(f"v_permlane32_swap_b32 v{T0}, v{T1}")
        a("s_nop 1")
        a(f"v_max_f32 v{T0}, v{T0}, v{T1}")
        if not first:
            a(f"v_max_f32 v{T0}, 0, v{T0}")
        a(f"v_add_f32 v{MREF}, v{MREF}, v{T0}")
        for i in range(16):
            a(f"v_sub_f32 v{S + i}, v{S + i}, v{T0}")
        for i in range(16):
            a(f"v_sub_f32 v{NEG + i}, v{NEG + i}, v{T0}")
        if not first:
            a(f"v_sub_f32 v{T1}, 0, v{T0}")
            a(f"v_exp_f32 v{T1}, v{T1}")
            a("s_nop 0")
            for i in range(16):
                a(f"v_mul_f32 v{O + i}, v{O + i}, v{T1}")
        a(f"s_branch K2_B{tag}")
    a.label("K2_FIN")
    a("s_nop 15\ns_nop 7")
    a("s_barrier")
    a("s_lshl_b32 s31, s23, 13")
    a("v_add_u32 v13, s31, v3")
    a("s_cmp_eq_u32 s24, 0")
    a("s_cbranch_scc1 K2_LOW")
    for j in range(4):
        a(f"ds_write_b128 v13, {vr(O + 4 * j, 4)} offset:{j * 1024}")
    a(f"v_mov_b32 v{S}, v{MREF}")
    a(f"ds_write_b128 v13, {vr(S, 4)} offset:4096")
    a("s_waitcnt lgkmcnt(0)")
    a("s_barrier")
    a("s_branch K2_END")
    a.label("K2_LOW")
    a("s_barrier")
    for j in range(4):
        a(f"ds_read_b128 {vr(S + 4 * j, 4)}, v13 offset:{j * 1024}")
    a(f"ds_read_b128 {vr(P, 4)}, v13 offset:4096")
    a("s_waitcnt lgkmcnt(0)")
    a(f"v_max_f32 v{T0}, v{MREF}, v{P}")
    a(f"v_sub_f32 v{T1}, v{MREF}, v{T0}")
    a(f"v_sub_f32 v{MX}, v{P}, v{T0}")
    a(f"v_exp_f32 v{T1}, v{T1}")
    a(f"v_exp_f32 v{MX}, v{MX}")
    a("s_nop 0")
    for i in range(16):
        a(f"v_mul_f32 v{O + i}, v{O + i}, v{T1}")
    for i in range(16):
        a(f"v_fmac_f32 v{O + i}, v{S + i}, v{MX}")
    a(f"v_mov_b32 v{T0}, v{O + 12}")
    a(f"v_mov_b32 v{T1}, v{O + 12}")
    a("s_nop 1")
    a(f"v_permlane32_swap_b32 v{T0}, v{T1}")
    a("s_nop 1")
    a(f"v_rcp_f32 v{T1}, v{T1}")
    a("s_nop 0")
    for i in range(16):
        a(f"v_mul_f32 v{O + i}, v{O + i}, v{T1}")
    for i in range(8):
        a(f"v_cvt_pk_bf16_f32 v{P + i}, v{O + 2 * i}, v{O + 2 * i + 1}")
    a("s_mov_b32 s32, 0\ns_mov_b32 s33, -1")
    a(f"v_cndmask_b32_e64 v{P + 6}, v{P + 6}, 0, s[32:33]")
    a(f"v_cndmask_b32_e64 v{P + 7}, v{P + 7}, 0, s[32:33]")
    a("s_lshl_b32 s25, s21, 2")
    a("s_add_u32 s25, s25, s23")
    a("s_lshl_b32 s25, s25, 4")
    a("s_add_u32 s25, s25, s20")
    a("s_lshl_b32 s25, s25, 11")
    a(f"buffer_store_dwordx4 {vr(P, 4)}, v3, s[16:19], s25 offen")
    a(f"buffer_store_dwordx4 {vr(P + 4, 4)}, v3, s[16:19], s25 offen offset:1024")
    a("s_waitcnt vmcnt(0)")
    a.label("K2_END")
    a("s_endpgm")
    return kn, a.text(), descriptor(kn, 112), f"grid=(256,1,1) block=(512,1,1) lds={LDS}"


def tr_lane_addr128(a, dst, lane, T, extra_s=None):
    a(f"v_lshrrev_b32 v{T}, 4, v{lane}")
    a(f"v_and_b32 v{T + 1}, 1, v{T}")
    a(f"v_lshrrev_b32 v{T + 2}, 1, v{T}")
    a(f"v_lshrrev_b32 v{T + 3}, 2, v{lane}")
    a(f"v_and_b32 v{T + 3}, 3, v{T + 3}")
    a(f"v_and_b32 v{T + 4}, 3, v{lane}")
    a(f"v_lshlrev_b32 v{T + 5}, 5, v{T + 1}")
    a(f"v_lshl_add_u32 v{T + 5}, v{T + 4}, 3, v{T + 5}")
    if extra_s is not None:
        a(f"v_add_u32 v{T + 5}, s{extra_s}, v{T + 5}")
    a(f"v_lshrrev_b32 v{T + 1}, 1, v{T + 3}")
    a(f"v_lshlrev_b32 v{T + 1}, 6, v{T + 1}")
    a(f"v_xor_b32 v{T + 5}, v{T + 1}, v{T + 5}")
    a(f"v_lshl_add_u32 v{T + 2}, v{T + 2}, 2, v{T + 3}")
    a(f"v_lshl_add_u32 v{dst}, v{T + 2}, 7, v{T + 5}")


def k3():
    kn = "k3_wo_kernel"
    a = Asm()
    header(a, kn)
    LDS = 57 * 1024
    a("s_cmp_ge_u32 s2, 224")
    a("s_cbranch_scc1 K3_END")
    a("s_load_dwordx2 s[4:5], s[0:1], 0")
    a("s_load_dwordx2 s[6:7], s[0:1], 16")
    a("s_load_dwordx2 s[8:9], s[0:1], 72")
    a("s_mul_i32 s20, s2, 9363")
    a("s_lshr_b32 s20, s20, 16")
    a("s_mul_i32 s21, s20, 7")
    a("s_sub_u32 s21, s2, s21")
    a("v_lshrrev_b32 v1, 6, v0")
    a("v_and_b32 v2, 63, v0")
    a("s_nop 0")
    a("v_readfirstlane_b32 s22, v1")
    a("s_waitcnt lgkmcnt(0)")
    srd(a, 12, 4, 0, X_BYTES)
    srd(a, 16, 6, 0, WO_BYTES)
    srd(a, 64, 8, WS_OF, FRAG_BYTES)
    srd(a, 68, 8, WS_H, H_BYTES)
    a("s_and_b32 s23, s22, 1")
    a("s_lshr_b32 s24, s22, 1")
    a("v_lshrrev_b32 v3, 3, v2")
    a("v_mul_u32_u24 v3, 0x380, v3")
    a("v_lshrrev_b32 v4, 4, v2")
    a("v_and_b32 v4, 1, v4")
    a("v_lshlrev_b32 v4, 2, v4")
    a("v_and_b32 v5, 7, v2")
    a("v_xor_b32 v4, v4, v5")
    a("v_lshl_add_u32 v3, v4, 4, v3")
    a("s_lshl_b32 s25, s21, 7")
    a("v_add_u32 v3, s25, v3")
    a("s_lshl_b32 s26, s22, 10")
    a("s_mul_i32 s27, s22, 0x1c00")
    for jj in range(14):
        a(f"s_add_u32 m0, s26, {jj * 4096}")
        a(f"s_add_u32 s32, s27, {jj * 4 * 7168}")
        a("buffer_load_dwordx4 v3, s[16:19], s32 offen lds")
    a("s_cmp_lg_u32 s22, 0")
    a("s_cbranch_scc1 K3_NOX")
    a(f"s_mov_b32 m0, {56 * 1024}")
    a(f"s_mov_b32 s32, {56 * 7168}")
    a("buffer_load_dwordx4 v3, s[16:19], s32 offen lds")
    a.label("K3_NOX")
    OFR = 64
    a("v_lshlrev_b32 v4, 4, v2")
    a("s_lshl_b32 s28, s20, 1")
    a("s_add_u32 s28, s28, s23")
    a("s_lshl_b32 s28, s28, 15")
    for i in range(32):
        if i % 4 == 0 and i:
            a("s_add_u32 s28, s28, 4096")
        a(f"buffer_load_dwordx4 {vr(OFR + 4 * i, 4)}, v4, s[64:67], s28 offen offset:{(i % 4) * 1024}")
    a("v_and_b32 v5, 31, v2")
    a("v_lshrrev_b32 v6, 5, v2")
    a("v_mul_u32_u24 v5, 0x380, v5")
    a("v_lshl_add_u32 v5, v6, 3, v5")
    a("s_lshl_b32 s29, s20, 1")
    a("s_add_u32 s29, s29, s23")
    a("s_mul_i32 s29, s29, 0x7000")
    a("s_lshl_b32 s30, s21, 7")
    a("s_add_u32 s29, s29, s30")
    a("s_lshl_b32 s30, s24, 6")
    a("s_add_u32 s29, s29, s30")
    XR = 40
    for q in range(4):
        a(f"buffer_load_dwordx2 {vr(XR + 2 * q, 2)}, v5, s[12:15], s29 offen offset:{16 * q}")
    a("s_lshl_b32 s31, s24, 6")
    tr_lane_addr128(a, 8, 2, 10, extra_s=31)
    a("s_waitcnt vmcnt(36)")
    a("s_barrier")
    ACC = 16
    WF = 48
    n = 0
    for h in range(16):
        for f in range(2):
            off = (h * 28 + 16 * f) * 128
            w = WF + 4 * (n & 1)
            a(f"ds_read_b64_tr_b16 {vr(w, 2)}, v8 offset:{off}")
            a(f"ds_read_b64_tr_b16 {vr(w + 2, 2)}, v8 offset:{off + 1024}")
            if n == 0:
                pass
            else:
                pw = WF + 4 * ((n - 1) & 1)
                a(f"s_waitcnt vmcnt({4 + 32 - n}) lgkmcnt(2)")
                a(mfma(ACC, pw, OFR + 4 * (n - 1), "0" if n == 1 else ACC))
            n += 1
    a("s_waitcnt vmcnt(0) lgkmcnt(0)")
    a(mfma(ACC, WF + 4, OFR + 4 * 31, ACC))
    a("s_nop 15\ns_nop 7")
    for q in range(4):
        a(f"v_lshlrev_b32 v10, 16, v{XR + 2 * q}")
        a(f"v_and_b32 v11, 0xffff0000, v{XR + 2 * q}")
        a(f"v_lshlrev_b32 v12, 16, v{XR + 2 * q + 1}")
        a(f"v_and_b32 v13, 0xffff0000, v{XR + 2 * q + 1}")
        for j in range(4):
            a(f"v_add_f32 v{10 + j}, v{10 + j}, v{ACC + 4 * q + j}")
        a(f"v_cvt_pk_bf16_f32 v{56 + 2 * q}, v10, v11")
        a(f"v_cvt_pk_bf16_f32 v{56 + 2 * q + 1}, v12, v13")
        a(f"buffer_store_dwordx2 {vr(56 + 2 * q, 2)}, v5, s[68:71], s29 offen offset:{16 * q}")
    a("s_waitcnt vmcnt(0)")
    a.label("K3_END")
    a("s_endpgm")
    return kn, a.text(), descriptor(kn, 192), f"grid=(224,1,1) block=(256,1,1) lds={LDS}"


def k4():
    kn = "k4_ffn1_kernel"
    a = Asm()
    header(a, kn)
    NSLOT, STAGE = 3, 16384
    ALDS = NSLOT * STAGE
    LDS = ALDS + 128 * 896
    a("s_cmp_ge_u32 s2, 224")
    a("s_cbranch_scc1 K4_END")
    a("s_load_dwordx2 s[4:5], s[0:1], 32")
    a("s_load_dwordx2 s[6:7], s[0:1], 40")
    a("s_load_dwordx2 s[8:9], s[0:1], 72")
    a("s_mul_i32 s20, s2, 4682")
    a("s_lshr_b32 s20, s20, 16")
    a("s_mul_i32 s21, s20, 14")
    a("s_sub_u32 s21, s2, s21")
    a("v_lshrrev_b32 v1, 6, v0")
    a("v_and_b32 v2, 63, v0")
    a("s_nop 0")
    a("v_readfirstlane_b32 s22, v1")
    a("s_waitcnt lgkmcnt(0)")
    srd(a, 12, 8, WS_H, H_BYTES)
    srd(a, 16, 4, 0, WG_BYTES)
    srd(a, 64, 6, 0, WG_BYTES)
    srd(a, 68, 8, WS_AF, AF_BYTES)
    a("s_mul_i32 s23, s20, 0x1c000")
    R, Fb, T = 116, 4, 172
    ln_issue(a, 12, 23, R, T)
    D = 184
    a(f"v_lshrrev_b32 v{D}, 4, v2")
    a(f"v_lshlrev_b32 v{D + 1}, 2, v{D}")
    a(f"v_and_b32 v{D + 2}, 15, v2")
    a(f"v_xor_b32 v{D + 1}, v{D + 1}, v{D + 2}")
    a("s_and_b32 s24, s22, 3")
    a("s_lshl_b32 s25, s24, 3")
    a(f"v_add_u32 v{D}, s25, v{D}")
    a(f"v_mul_u32_u24 v{D}, 0xe00, v{D}")
    a(f"v_lshl_add_u32 v{D}, v{D + 1}, 4, v{D}")
    a("s_lshl_b32 s25, s21, 8")
    a(f"v_add_u32 v{D}, s25, v{D}")
    a("s_lshr_b32 s26, s22, 2")
    a("s_lshl_b32 s27, s26, 13")
    a("s_lshl_b32 s25, s24, 11")
    a("s_add_u32 s27, s27, s25")
    a("s_cmp_eq_u32 s26, 0")
    a("s_cselect_b32 s72, s4, s6")
    a("s_cselect_b32 s73, s5, s7")
    a(f"s_mov_b32 s74, 0x{WG_BYTES:x}")
    a("s_mov_b32 s75, 0x00020000")

    def dma_stage(s):
        slot = s % NSLOT
        for i in range(2):
            a(f"s_add_u32 m0, s27, {slot * STAGE + i * 1024}")
            a(f"s_mov_b32 s36, 0x{(s * 32 + 4 * i) * 3584:x}")
            a(f"buffer_load_dwordx4 v{D}, s[72:75], s36 offen lds")

    PRE = 2
    for s in range(PRE):
        dma_stage(s)
    ln_compute(a, R, Fb, T, ALDS, PRE * 2)
    XA = 4
    a_frag_addr(a, XA, 2, 10, ALDS)
    a("s_and_b32 s29, s22, 1")
    a("s_mul_i32 s29, s29, 0xe000")
    for j in range(4):
        a(f"v_add_u32 v{XA + j}, s29, v{XA + j}")
    WA = 8
    a("v_lshrrev_b32 v10, 4, v2")
    a("v_and_b32 v11, 1, v10")
    a("v_lshrrev_b32 v12, 1, v10")
    a("v_lshrrev_b32 v13, 2, v2")
    a("v_and_b32 v13, 3, v13")
    a("v_and_b32 v14, 3, v2")
    a("v_lshlrev_b32 v15, 5, v11")
    a("v_lshl_add_u32 v15, v14, 3, v15")
    a("s_lshr_b32 s30, s22, 1")
    a("v_xor_b32 v16, s30, v13")
    a("v_lshl_add_u32 v15, v16, 6, v15")
    a("v_lshl_add_u32 v17, v12, 3, v13")
    a(f"v_lshl_add_u32 v{WA}, v17, 8, v15")
    G0, G1, U0, U1 = 20, 36, 52, 68
    XF = 84
    WF = 100
    first = True
    for s in range(14):
        outstanding = min(13, s + PRE - 1) - s
        a(f"s_waitcnt vmcnt({outstanding * 2}) lgkmcnt(0)")
        a("s_barrier")
        if s + PRE < 14:
            dma_stage(s + PRE)
        slot = s % NSLOT
        for kk in range(2):
            ks = 2 * s + kk
            for sec in range(2):
                off = slot * STAGE + sec * 8192 + kk * 4096
                a(f"ds_read_b64_tr_b16 {vr(WF + 8 * kk + 4 * sec, 2)}, v{WA} offset:{off}")
                a(f"ds_read_b64_tr_b16 {vr(WF + 8 * kk + 4 * sec + 2, 2)}, v{WA} offset:{off + 1024}")
            for mt in range(2):
                a(f"ds_read_b128 {vr(XF + 8 * kk + 4 * mt, 4)}, v{XA + (ks & 3)} offset:{(ks >> 2) * 128 + mt * 28672}")
        for kk in range(2):
            a(f"s_waitcnt lgkmcnt({6 if kk == 0 else 0})")
            wg, wu = WF + 8 * kk, WF + 8 * kk + 4
            x0, x1 = XF + 8 * kk, XF + 8 * kk + 4
            a(mfma(G0, wg, x0, "0" if first else G0))
            a(mfma(U0, wu, x0, "0" if first else U0))
            a(mfma(G1, wg, x1, "0" if first else G1))
            a(mfma(U1, wu, x1, "0" if first else U1))
            first = False
    a("s_nop 15\ns_nop 7")
    k = 2.0 * math.sqrt(2.0 / math.pi) * math.log2(math.e)
    a(f"s_mov_b32 s36, 0x{f2u(-k):08x}")
    a(f"s_mov_b32 s37, 0x{f2u(-k * 0.044715):08x}")
    a("v_lshlrev_b32 v9, 4, v2")
    a("s_lshl_b32 s24, s20, 2")
    a("s_and_b32 s25, s22, 1")
    a("s_lshl_b32 s25, s25, 1")
    a("s_add_u32 s24, s24, s25")
    a("s_mul_i32 s24, s24, 112")
    a("s_lshl_b32 s25, s21, 3")
    a("s_add_u32 s24, s24, s25")
    a("s_lshr_b32 s25, s22, 1")
    a("s_lshl_b32 s25, s25, 1")
    a("s_add_u32 s24, s24, s25")
    a("s_lshl_b32 s24, s24, 10")
    for t, (G, U) in enumerate(((G0, U0), (G1, U1))):
        for i in range(16):
            x = 84 + i
            a(f"v_mul_f32 v{x}, v{G + i}, v{G + i}")
            a(f"v_mov_b32 v{100 + i}, s36")
            a(f"v_fmac_f32 v{100 + i}, s37, v{x}")
            a(f"v_mul_f32 v{x}, v{100 + i}, v{G + i}")
            a(f"v_exp_f32 v{x}, v{x}")
            a(f"v_mul_f32 v{U + i}, v{U + i}, v{G + i}")
            a(f"v_add_f32 v{x}, 1.0, v{x}")
            a(f"v_rcp_f32 v{x}, v{x}")
            a("s_nop 0")
            a(f"v_mul_f32 v{U + i}, v{U + i}, v{x}")
        for i in range(8):
            a(f"v_cvt_pk_bf16_f32 v{G + i}, v{U + 2 * i}, v{U + 2 * i + 1}")
        if t == 1:
            a(f"s_add_u32 s24, s24, {112 * 1024}")
        a(f"buffer_store_dwordx4 {vr(G, 4)}, v9, s[68:71], s24 offen")
        a(f"buffer_store_dwordx4 {vr(G + 4, 4)}, v9, s[68:71], s24 offen offset:1024")
    a("s_waitcnt vmcnt(0)")
    a.label("K4_END")
    a("s_endpgm")
    return kn, a.text(), descriptor(kn, 192), f"grid=(224,1,1) block=(512,1,1) lds={LDS}"


def k5():
    kn = "k5_down_kernel"
    a = Asm()
    header(a, kn)
    NSL = 8
    LDS = 8 * 16384
    a("s_cmp_ge_u32 s2, 224")
    a("s_cbranch_scc1 K5_END")
    a("s_load_dwordx2 s[4:5], s[0:1], 48")
    a("s_load_dwordx2 s[6:7], s[0:1], 56")
    a("s_load_dwordx2 s[8:9], s[0:1], 72")
    a("s_mul_i32 s20, s2, 9363")
    a("s_lshr_b32 s20, s20, 16")
    a("s_mul_i32 s21, s20, 7")
    a("s_sub_u32 s21, s2, s21")
    a("v_lshrrev_b32 v1, 6, v0")
    a("v_and_b32 v2, 63, v0")
    a("s_nop 0")
    a("v_readfirstlane_b32 s22, v1")
    a("s_waitcnt lgkmcnt(0)")
    srd(a, 12, 4, 0, WD_BYTES)
    srd(a, 16, 6, 0, H_BYTES)
    srd(a, 64, 8, WS_AF, AF_BYTES)
    srd(a, 68, 8, WS_H, H_BYTES)
    a("v_lshrrev_b32 v3, 3, v2")
    a("v_mul_u32_u24 v3, 0x380, v3")
    a("v_lshrrev_b32 v4, 4, v2")
    a("v_and_b32 v4, 1, v4")
    a("v_lshlrev_b32 v4, 2, v4")
    a("v_and_b32 v5, 7, v2")
    a("v_xor_b32 v4, v4, v5")
    a("v_lshl_add_u32 v3, v4, 4, v3")
    a("s_lshl_b32 s25, s21, 7")
    a("v_add_u32 v3, s25, v3")
    a("s_lshl_b32 s26, s22, 14")
    a(f"s_mul_i32 s27, s22, {224 * 896}")
    a("v_lshlrev_b32 v4, 4, v2")
    a("s_mul_i32 s28, s20, 224")
    a("s_mul_i32 s29, s22, 14")
    a("s_add_u32 s28, s28, s29")
    a("s_lshl_b32 s28, s28, 10")
    a(f"s_add_u32 s29, s28, {112 * 1024}")
    BF = 96

    def dma(s):
        slot = s % NSL
        for i in range(2):
            a(f"s_add_u32 m0, s26, {slot * 2048 + i * 1024}")
            a(f"s_add_u32 s32, s27, {(16 * s + 8 * i) * 896}")
            a("buffer_load_dwordx4 v3, s[12:15], s32 offen lds")

    def bload(s):
        so, io = divmod(s * 1024, 4096)
        if s and io == 0:
            a("s_add_u32 s28, s28, 4096")
            a("s_add_u32 s29, s29, 4096")
        a(f"buffer_load_dwordx4 {vr(BF + 8 * s, 4)}, v4, s[64:67], s28 offen offset:{io}")
        a(f"buffer_load_dwordx4 {vr(BF + 8 * s + 4, 4)}, v4, s[64:67], s29 offen offset:{io}")

    order = []
    for s in range(14):
        if s < NSL:
            dma(s)
            order.append(("d", s, 2))
        bload(s)
        order.append(("b", s, 2))
    tr_lane_addr128(a, 8, 2, 10)
    a("v_add_u32 v8, s26, v8")
    a("v_xor_b32 v9, 64, v8")
    ACC = 16
    WF = 80
    first = True

    def outstanding_after(kind, s):
        idx = max(i for i, o in enumerate(order) if o[0] == kind and o[1] == s)
        return sum(o[2] for o in order[idx + 1:])

    for s in range(14):
        slot = s % NSL
        n = min(outstanding_after("d", s), outstanding_after("b", s))
        a(f"s_waitcnt vmcnt({n})")
        w = WF + 8 * (s & 1)
        for nt in range(2):
            a(f"ds_read_b64_tr_b16 {vr(w + 4 * nt, 2)}, v{8 + nt} offset:{slot * 2048}")
            a(f"ds_read_b64_tr_b16 {vr(w + 4 * nt + 2, 2)}, v{8 + nt} offset:{slot * 2048 + 1024}")
        a("s_waitcnt lgkmcnt(0)")
        if s + NSL < 14:
            dma(s + NSL)
            order.append(("d", s + NSL, 2))
        for mt in range(2):
            for nt in range(2):
                acc = ACC + 16 * (2 * mt + nt)
                a(mfma(acc, w + 4 * nt, BF + 8 * s + 4 * mt, "0" if first else acc))
        first = False
    a("s_nop 15\ns_nop 7")
    a("v_lshlrev_b32 v10, 4, v2")
    a("v_add_u32 v10, s26, v10")
    for q in range(16):
        a(f"ds_write_b128 v10, {vr(ACC + 4 * q, 4)} offset:{q * 1024}")
    a("v_and_b32 v5, 31, v2")
    a("v_lshrrev_b32 v6, 5, v2")
    a("v_mul_u32_u24 v5, 0x380, v5")
    a("v_lshl_add_u32 v5, v6, 3, v5")
    a("s_lshr_b32 s30, s22, 2")
    a("s_lshl_b32 s31, s20, 1")
    a("s_add_u32 s31, s31, s30")
    a("s_mul_i32 s31, s31, 0x7000")
    a("s_lshl_b32 s30, s21, 7")
    a("s_add_u32 s31, s31, s30")
    a("s_lshr_b32 s30, s22, 1")
    a("s_and_b32 s30, s30, 1")
    a("s_lshl_b32 s30, s30, 6")
    a("s_add_u32 s31, s31, s30")
    a("s_and_b32 s30, s22, 1")
    a("s_lshl_b32 s30, s30, 5")
    a("s_add_u32 s31, s31, s30")
    a("buffer_load_dwordx2 v[12:13], v5, s[68:71], s31 offen")
    a("buffer_load_dwordx2 v[14:15], v5, s[68:71], s31 offen offset:16")
    a("s_waitcnt lgkmcnt(0)")
    a("s_barrier")
    a("v_lshlrev_b32 v10, 4, v2")
    a("s_lshl_b32 s30, s22, 11")
    a("v_add_u32 v10, s30, v10")
    a("v_add_u32 v11, 0x10000, v10")
    for ww in range(8):
        for e in range(2):
            a(f"ds_read_b128 {vr(96 + 8 * ww + 4 * e, 4)}, v{10 + (ww >> 2)} offset:{(ww & 3) * 16384 + e * 1024}")
    a("s_waitcnt vmcnt(0)")
    for e in range(2):
        a(f"v_lshlrev_b32 v{16 + 4 * e}, 16, v{12 + 2 * e}")
        a(f"v_and_b32 v{17 + 4 * e}, 0xffff0000, v{12 + 2 * e}")
        a(f"v_lshlrev_b32 v{18 + 4 * e}, 16, v{13 + 2 * e}")
        a(f"v_and_b32 v{19 + 4 * e}, 0xffff0000, v{13 + 2 * e}")
    for ww in range(1, 8):
        a(f"s_waitcnt lgkmcnt({min(15, 2 * (7 - ww))})")
        for e in range(2):
            for j in range(4):
                a(f"v_add_f32 v{96 + 4 * e + j}, v{96 + 4 * e + j}, v{96 + 8 * ww + 4 * e + j}")
    for e in range(2):
        for j in range(4):
            a(f"v_add_f32 v{16 + 4 * e + j}, v{16 + 4 * e + j}, v{96 + 4 * e + j}")
        a(f"v_cvt_pk_bf16_f32 v{24 + 2 * e}, v{16 + 4 * e}, v{17 + 4 * e}")
        a(f"v_cvt_pk_bf16_f32 v{25 + 2 * e}, v{18 + 4 * e}, v{19 + 4 * e}")
        a(f"buffer_store_dwordx2 {vr(24 + 2 * e, 2)}, v5, s[16:19], s31 offen offset:{16 * e}")
    a("s_waitcnt vmcnt(0)")
    a.label("K5_END")
    a("s_endpgm")
    return kn, a.text(), descriptor(kn, 208), f"grid=(224,1,1) block=(512,1,1) lds={LDS}"


def build(kernels):
    ref = open("cdna_kernels/" + NAME + ".s.ref").read()
    hdr = []
    for line in ref.split("\n"):
        if line.startswith("; @launch"):
            break
        hdr.append(line)
    out = "\n".join(hdr) + "\n"
    ks = [k() for k in kernels]
    for kn, text, desc, launch in ks:
        out += f"; @launch kernel={kn} {launch}\n"
    out += '.amdgcn_target "amdgcn-amd-amdhsa--gfx950"\n.text\n'
    for kn, text, desc, launch in ks:
        out += text
    out += '.section .rodata,"a"\n'
    for kn, text, desc, launch in ks:
        out += ".p2align 6\n" + desc
    return out


if __name__ == "__main__":
    out = build([k1, k2, k3, k4, k5])
    path = sys.argv[1] if len(sys.argv) > 1 else "cdna_kernels/" + NAME + ".s"
    open(path, "w").write(out)
    print("wrote", path, len(out))
```

```python
import sys, math, struct

NAME = "sequential_preLN__softmax_full_mha__geglu_ffn__prompt"
MB = 1 << 20
WS_QF, WS_KF, WS_VF, WS_OF, WS_H, WS_AF = 0, 2 * MB, 4 * MB, 6 * MB, 8 * MB, 12 * MB
FRAG_BYTES = 2 * MB
H_BYTES = 2048 * 896
AF_BYTES = 64 * 112 * 1024
X_BYTES = 2048 * 896
WQKV_BYTES = 448 * 2688
WO_BYTES = 448 * 896
WG_BYTES = 448 * 3584
WD_BYTES = 1792 * 896


def f2u(x):
    return struct.unpack("<I", struct.pack("<f", x))[0]


PROFILE = False
PROF_WG = 9


class Asm:
    def __init__(self):
        self.L = []
        self.nst = 0

    def stamp(self):
        if not PROFILE:
            return
        self(f"s_memtime s[{80 + 2 * self.nst}:{81 + 2 * self.nst}]")
        self.nst += 1
        assert self.nst <= 8

    def dump(self):
        if not PROFILE:
            return
        self.stamp()
        self("s_load_dwordx2 s[76:77], s[0:1], 64")
        self("s_waitcnt lgkmcnt(0)")
        self("s_mov_b32 s78, 256\ns_mov_b32 s79, 0x00020000")
        self(f"s_cmp_lg_u32 s2, {PROF_WG}")
        lab = f"PD_{id(self)}"
        self(f"s_cbranch_scc1 {lab}")
        self("s_cmp_lg_u32 s22, 0")
        self(f"s_cbranch_scc1 {lab}")
        self("v_mov_b32 v3, 0")
        for i in range(self.nst):
            self(f"v_mov_b32 v4, s{80 + 2 * i}\nv_mov_b32 v5, s{81 + 2 * i}")
            self(f"buffer_store_dwordx2 v[4:5], v3, s[76:79], 0 offen offset:{8 * i}")
            self("s_nop 1")
        self("s_waitcnt vmcnt(0)")
        self.label(lab)

    def __call__(self, s):
        for line in s.strip("\n").split("\n"):
            self.L.append("    " + line.strip())

    def label(self, s):
        self.L.append(s + ":")

    def text(self):
        return "\n".join(self.L) + "\n"


def vr(b, n):
    return f"v[{b}:{b + n - 1}]"


def sr(b, n):
    return f"s[{b}:{b + n - 1}]"


def srd(a, dst, ptr, off, size):
    if off:
        a(f"s_add_u32 s{dst}, s{ptr}, 0x{off:x}")
        a(f"s_addc_u32 s{dst + 1}, s{ptr + 1}, 0")
    else:
        a(f"s_mov_b32 s{dst}, s{ptr}")
        a(f"s_mov_b32 s{dst + 1}, s{ptr + 1}")
    a(f"s_mov_b32 s{dst + 2}, 0x{size:x}")
    a(f"s_mov_b32 s{dst + 3}, 0x00020000")


def mfma(d, A, B, C):
    c = C if isinstance(C, str) else vr(C, 16)
    return f"v_mfma_f32_32x32x16_bf16 {vr(d, 16)}, {vr(A, 4)}, {vr(B, 4)}, {c}"


def header(a, kname):
    a.L.append(f".globl {kname}")
    a.L.append(".p2align 8")
    a.L.append(f".type {kname},@function")
    a.L.append(f"{kname}:")


def descriptor(kname, vgpr, sgpr=96):
    v = (vgpr + 7) // 8 * 8
    return f""".amdhsa_kernel {kname}
  .amdhsa_next_free_vgpr {v}
  .amdhsa_next_free_sgpr {sgpr}
  .amdhsa_accum_offset {v}
  .amdhsa_group_segment_fixed_size 0
  .amdhsa_kernarg_size 80
  .amdhsa_user_sgpr_count 2
  .amdhsa_user_sgpr_kernarg_segment_ptr 1
  .amdhsa_system_sgpr_workgroup_id_x 1
.end_amdhsa_kernel
"""


def ln_issue(a, srd_s, soff_s, R, T):
    a(f"v_lshrrev_b32 v{T}, 2, v0")
    a(f"v_and_b32 v{T + 1}, 3, v0")
    a(f"v_mul_u32_u24 v{T + 2}, 0x380, v{T}")
    a(f"v_lshl_add_u32 v{T + 3}, v{T + 1}, 4, v{T + 2}")
    for i in range(14):
        a(f"buffer_load_dwordx4 {vr(R + 4 * i, 4)}, v{T + 3}, {sr(srd_s, 4)}, s{soff_s} offen offset:{64 * i}")


def ln_compute(a, R, Fb, T, lds_base, later_vm):
    row, p, rowoff = T, T + 1, T + 2
    A0, A1 = T + 4, T + 6
    assert A0 % 2 == 0 and Fb % 2 == 0
    a(f"v_mov_b32 v{A0}, 0\nv_mov_b32 v{A0 + 1}, 0\nv_mov_b32 v{A1}, 0\nv_mov_b32 v{A1 + 1}, 0")
    for i in range(14):
        a(f"s_waitcnt vmcnt({min(63, later_vm + 13 - i)})")
        for j in range(4):
            a(f"v_lshlrev_b32 v{Fb + 8 * i + 2 * j}, 16, v{R + 4 * i + j}")
            a(f"v_and_b32 v{Fb + 8 * i + 2 * j + 1}, 0xffff0000, v{R + 4 * i + j}")
        for j in range(4):
            acc = A0 if j % 2 == 0 else A1
            a(f"v_pk_add_f32 {vr(acc, 2)}, {vr(acc, 2)}, {vr(Fb + 8 * i + 2 * j, 2)}")
    S = T + 8
    a.stamp()
    a(f"v_pk_add_f32 {vr(A0, 2)}, {vr(A0, 2)}, {vr(A1, 2)}")
    a(f"v_add_f32 v{S}, v{A0}, v{A0 + 1}")
    a("s_nop 1")
    a(f"v_add_f32_dpp v{S}, v{S}, v{S} quad_perm:[1,0,3,2] row_mask:0xf bank_mask:0xf")
    a("s_nop 1")
    a(f"v_add_f32_dpp v{S}, v{S}, v{S} quad_perm:[2,3,0,1] row_mask:0xf bank_mask:0xf")
    M = T + 10
    a(f"v_mul_f32 v{M}, 0x{f2u(-1.0 / 448.0):08x}, v{S}")
    a(f"v_mov_b32 v{M + 1}, v{M}")
    a(f"v_mov_b32 v{A0}, 0\nv_mov_b32 v{A0 + 1}, 0\nv_mov_b32 v{A1}, 0\nv_mov_b32 v{A1 + 1}, 0")
    for t in range(56):
        a(f"v_pk_add_f32 {vr(Fb + 2 * t, 2)}, {vr(Fb + 2 * t, 2)}, {vr(M, 2)}")
    for t in range(56):
        acc = A0 if t % 2 == 0 else A1
        a(f"v_pk_fma_f32 {vr(acc, 2)}, {vr(Fb + 2 * t, 2)}, {vr(Fb + 2 * t, 2)}, {vr(acc, 2)}")
    a(f"v_pk_add_f32 {vr(A0, 2)}, {vr(A0, 2)}, {vr(A1, 2)}")
    a(f"v_add_f32 v{S}, v{A0}, v{A0 + 1}")
    a("s_nop 1")
    a(f"v_add_f32_dpp v{S}, v{S}, v{S} quad_perm:[1,0,3,2] row_mask:0xf bank_mask:0xf")
    a("s_nop 1")
    a(f"v_add_f32_dpp v{S}, v{S}, v{S} quad_perm:[2,3,0,1] row_mask:0xf bank_mask:0xf")
    a(f"v_mov_b32 v{M + 1}, 0x{f2u(1e-5):08x}")
    a(f"v_fmac_f32 v{M + 1}, 0x{f2u(1.0 / 448.0):08x}, v{S}")
    a(f"v_rsq_f32 v{M}, v{M + 1}")
    a("s_nop 0")
    a(f"v_mov_b32 v{M + 1}, v{M}")
    a(f"v_lshrrev_b32 v{S}, 1, v{row}")
    a(f"v_and_b32 v{S}, 7, v{S}")
    a(f"v_xor_b32 v{S}, v{S}, v{p}")
    a(f"v_lshl_add_u32 v{S}, v{S}, 4, v{rowoff}")
    a(f"v_add_u32 v{S}, 0x{lds_base:x}, v{S}")
    a(f"v_xor_b32 v{S + 1}, 64, v{S}")
    for i in range(14):
        for j in range(4):
            a(f"v_pk_mul_f32 {vr(Fb + 8 * i + 2 * j, 2)}, {vr(Fb + 8 * i + 2 * j, 2)}, {vr(M, 2)}")
        for j in range(4):
            a(f"v_cvt_pk_bf16_f32 v{R + 4 * i + j}, v{Fb + 8 * i + 2 * j}, v{Fb + 8 * i + 2 * j + 1}")
        a(f"ds_write_b128 v{S + (i & 1)}, {vr(R + 4 * i, 4)} offset:{(i >> 1) * 128}")


def a_frag_addr(a, dst, lane, T, lds_base):
    a(f"v_and_b32 v{T}, 31, v{lane}")
    a(f"v_lshrrev_b32 v{T + 1}, 5, v{lane}")
    a(f"v_lshrrev_b32 v{T + 2}, 1, v{T}")
    a(f"v_and_b32 v{T + 2}, 7, v{T + 2}")
    a(f"v_xor_b32 v{T + 1}, v{T + 1}, v{T + 2}")
    a(f"v_mul_u32_u24 v{T}, 0x380, v{T}")
    a(f"v_lshl_add_u32 v{dst}, v{T + 1}, 4, v{T}")
    a(f"v_add_u32 v{dst}, 0x{lds_base:x}, v{dst}")
    for j in range(1, 4):
        a(f"v_xor_b32 v{dst + j}, {32 * j}, v{dst}")


def k1():
    kn = "k1_qkv_kernel"
    a = Asm()
    header(a, kn)
    NSLOT, STAGE = 5, 12288
    ALDS = NSLOT * STAGE
    LDS = ALDS + 64 * 896
    a("s_cmp_ge_u32 s2, 256")
    a("s_cbranch_scc1 K1_END")
    a.stamp()
    a("s_load_dwordx2 s[4:5], s[0:1], 0")
    a("s_load_dwordx2 s[6:7], s[0:1], 8")
    a("s_load_dwordx2 s[8:9], s[0:1], 72")
    a("s_and_b32 s24, s2, 7")
    a("s_lshr_b32 s25, s2, 3")
    a("s_lshr_b32 s20, s24, 1")
    a("s_lshl_b32 s20, s20, 3")
    a("s_lshr_b32 s26, s25, 2")
    a("s_add_u32 s20, s20, s26")
    a("s_and_b32 s21, s24, 1")
    a("s_lshl_b32 s21, s21, 2")
    a("s_and_b32 s26, s25, 3")
    a("s_add_u32 s21, s21, s26")
    a("v_lshrrev_b32 v1, 6, v0")
    a("v_and_b32 v2, 63, v0")
    a("s_nop 0")
    a("v_readfirstlane_b32 s22, v1")
    a("s_waitcnt lgkmcnt(0)")
    a.stamp()
    srd(a, 12, 4, 0, X_BYTES)
    srd(a, 16, 6, 0, WQKV_BYTES)
    srd(a, 64, 8, 0, 6 * MB)
    a("s_mul_i32 s23, s20, 0xe000")
    R, Fb, T = 116, 4, 172
    ln_issue(a, 12, 23, R, T)
    D = 184
    a(f"v_lshrrev_b32 v{D}, 3, v2")
    a(f"v_lshl_add_u32 v{D}, v1, 3, v{D}")
    a(f"v_mul_u32_u24 v{D}, 0xa80, v{D}")
    a(f"v_lshrrev_b32 v{D + 1}, 4, v2")
    a(f"v_and_b32 v{D + 1}, 1, v{D + 1}")
    a(f"v_lshlrev_b32 v{D + 1}, 2, v{D + 1}")
    a(f"v_and_b32 v{D + 2}, 7, v2")
    a(f"v_xor_b32 v{D + 1}, v{D + 1}, v{D + 2}")
    a(f"v_lshl_add_u32 v{D}, v{D + 1}, 4, v{D}")
    a("s_mul_i32 s26, s21, 112")
    a(f"v_add_u32 v{D}, s26, v{D}")
    a("s_lshl_b32 s27, s22, 10")

    def dma_stage(s):
        slot = s % NSLOT
        for sec in range(3):
            a(f"s_add_u32 m0, s27, {slot * STAGE + sec * 4096}")
            a(f"s_mov_b32 s28, 0x{s * 32 * 2688 + sec * 896:x}")
            a(f"buffer_load_dwordx4 v{D}, s[16:19], s28 offen lds")

    PRE = 4
    for s in range(PRE):
        dma_stage(s)
    ln_compute(a, R, Fb, T, ALDS, PRE * 3)
    a.stamp()
    XA = 4
    a_frag_addr(a, XA, 2, 10, ALDS)
    a("s_and_b32 s29, s22, 1")
    a("s_mul_i32 s29, s29, 0x7000")
    for j in range(4):
        a(f"v_add_u32 v{XA + j}, s29, v{XA + j}")
    WA = 8
    a("v_lshrrev_b32 v10, 4, v2")
    a("v_and_b32 v11, 1, v10")
    a("v_lshrrev_b32 v12, 1, v10")
    a("v_lshrrev_b32 v13, 2, v2")
    a("v_and_b32 v13, 3, v13")
    a("v_and_b32 v14, 3, v2")
    a("v_lshlrev_b32 v15, 5, v11")
    a("v_lshl_add_u32 v15, v14, 3, v15")
    a("s_lshr_b32 s30, s22, 1")
    a("s_mul_i32 s30, s30, 56")
    a("v_add_u32 v15, s30, v15")
    a("v_lshrrev_b32 v16, 1, v13")
    a("v_lshlrev_b32 v16, 6, v16")
    a("v_xor_b32 v15, v16, v15")
    a("v_lshl_add_u32 v17, v12, 3, v13")
    a(f"v_lshl_add_u32 v{WA}, v17, 7, v15")
    AQ, AK, AV = 20, 36, 52
    XF = 68
    WF = 76
    first = True
    for s in range(14):
        outstanding = min(13, s + PRE - 1) - s
        a(f"s_waitcnt vmcnt({outstanding * 3}) lgkmcnt(0)")
        a("s_barrier")
        if s + PRE < 14:
            dma_stage(s + PRE)
        slot = s % NSLOT
        for kk in range(2):
            ks = 2 * s + kk
            a(f"ds_read_b128 {vr(XF + 4 * kk, 4)}, v{XA + (ks & 3)} offset:{(ks >> 2) * 128}")
            for sec in range(3):
                off = slot * STAGE + sec * 4096 + kk * 2048
                a(f"ds_read_b64_tr_b16 {vr(WF + 12 * kk + 4 * sec, 2)}, v{WA} offset:{off}")
                a(f"ds_read_b64_tr_b16 {vr(WF + 12 * kk + 4 * sec + 2, 2)}, v{WA} offset:{off + 512}")
        for kk in range(2):
            a(f"s_waitcnt lgkmcnt({7 if kk == 0 else 0})")
            w = WF + 12 * kk
            x = XF + 4 * kk
            a(mfma(AQ, w, x, "0" if first else AQ))
            a(mfma(AK, w + 4, x, "0" if first else AK))
            a(mfma(AV, x, w + 8, "0" if first else AV))
            first = False
    a.stamp()
    a("s_nop 15\ns_nop 7")
    a("s_mov_b32 s32, 0\ns_mov_b32 s33, -1")
    a("s_mov_b32 s34, 0xf0000000\ns_mov_b32 s35, 0xf0000000")
    a("v_and_b32 v10, 31, v2")
    a("v_mov_b32 v11, 0x3f803f80")
    a("v_cmp_eq_u32 vcc, 28, v10")
    a("s_nop 1")
    a("v_cndmask_b32 v11, 0, v11, vcc")
    qs = 28.0 ** -0.5 * math.log2(math.e)
    a(f"s_mov_b32 s36, 0x{f2u(qs):08x}")
    for i in range(16):
        a(f"v_mul_f32 v{AQ + i}, s36, v{AQ + i}")
    for (acc, dst) in ((AQ, 68), (AK, 76), (AV, 84)):
        for i in range(8):
            a(f"v_cvt_pk_bf16_f32 v{dst + i}, v{acc + 2 * i}, v{acc + 2 * i + 1}")
    for dst in (68, 76):
        a(f"v_cndmask_b32_e64 v{dst + 6}, v{dst + 6}, 0, s[32:33]")
        a(f"v_cndmask_b32_e64 v{dst + 7}, v{dst + 7}, 0, s[32:33]")
    for i in range(8):
        a(f"v_cndmask_b32_e64 v{84 + i}, v{84 + i}, v11, s[34:35]")
    a("s_lshr_b32 s30, s22, 1")
    a("s_lshl_b32 s31, s21, 1")
    a("s_add_u32 s30, s30, s31")
    a("s_lshl_b32 s30, s30, 6")
    a("s_lshl_b32 s31, s20, 1")
    a("s_add_u32 s30, s30, s31")
    a("s_and_b32 s31, s22, 1")
    a("s_add_u32 s30, s30, s31")
    a("s_lshl_b32 s30, s30, 11")
    a("v_lshlrev_b32 v10, 4, v2")
    for k, dst in enumerate((68, 76, 84)):
        a(f"s_add_u32 s31, s30, 0x{k * 2 * MB:x}")
        a(f"buffer_store_dwordx4 {vr(dst, 4)}, v10, s[64:67], s31 offen")
        a(f"buffer_store_dwordx4 {vr(dst + 4, 4)}, v10, s[64:67], s31 offen offset:1024")
    a("s_waitcnt vmcnt(0)")
    a.dump()
    a.label("K1_END")
    a("s_endpgm")
    return kn, a.text(), descriptor(kn, 192), f"grid=(256,1,1) block=(256,1,1) lds={LDS}"


def k2():
    kn = "k2_attn_kernel"
    a = Asm()
    header(a, kn)
    NSLOT, STAGE = 4, 16384
    LDS = NSLOT * STAGE
    THR = 16.0
    a("s_cmp_ge_u32 s2, 256")
    a("s_cbranch_scc1 K2_END")
    a.stamp()
    a("s_load_dwordx2 s[8:9], s[0:1], 72")
    a("s_and_b32 s20, s2, 15")
    a("s_lshr_b32 s21, s2, 4")
    a("v_lshrrev_b32 v1, 6, v0")
    a("v_and_b32 v2, 63, v0")
    a("s_nop 0")
    a("v_readfirstlane_b32 s22, v1")
    a("s_waitcnt lgkmcnt(0)")
    a.stamp()
    srd(a, 12, 8, 0, 6 * MB)
    srd(a, 16, 8, WS_OF, FRAG_BYTES)
    a("s_and_b32 s23, s22, 3")
    a("s_lshr_b32 s24, s22, 2")
    a("v_lshlrev_b32 v3, 4, v2")
    Q = 4
    a("s_lshl_b32 s25, s20, 6")
    a("s_lshl_b32 s26, s21, 2")
    a("s_add_u32 s25, s25, s26")
    a("s_add_u32 s25, s25, s23")
    a("s_lshl_b32 s25, s25, 11")
    a(f"buffer_load_dwordx4 {vr(Q, 4)}, v3, s[12:15], s25 offen")
    a(f"buffer_load_dwordx4 {vr(Q + 4, 4)}, v3, s[12:15], s25 offen offset:1024")
    a("s_lshl_b32 s27, s20, 6")
    a("s_lshl_b32 s28, s24, 5")
    a("s_add_u32 s27, s27, s28")
    a("s_lshl_b32 s27, s27, 11")
    a("s_lshl_b32 s28, s23, 10")
    a("s_add_u32 s27, s27, s28")
    a(f"s_add_u32 s27, s27, 0x{WS_KF:x}")
    a(f"s_add_u32 s29, s27, 0x{2 * MB:x}")
    a("s_lshl_b32 s30, s24, 13")
    a("s_add_u32 s30, s30, s28")

    def dma(slot):
        a(f"s_add_u32 m0, s30, {slot * STAGE}")
        a("s_nop 0")
        a("buffer_load_dwordx4 v3, s[12:15], s27 offen lds")
        a(f"s_add_u32 m0, s30, {slot * STAGE + 4096}")
        a("s_add_u32 s27, s27, 4096")
        a("buffer_load_dwordx4 v3, s[12:15], s29 offen lds")
        a("s_add_u32 s29, s29, 4096")

    PRE = 3
    for s in range(PRE):
        dma(s)
    a("s_lshl_b32 s31, s24, 13")
    a("v_add_u32 v12, s31, v3")
    RA = 12
    NEG = 16
    O = 32
    S = 48
    P = 64
    KV = 72
    MX, T0, T1, MREF = 104, 105, 106, 107
    a(f"s_mov_b32 s36, 0x{f2u(THR):08x}")
    for i in range(16):
        a(f"v_mov_b32 v{O + i}, 0")
        a(f"v_mov_b32 v{NEG + i}, 0")
    a(f"v_mov_b32 v{MREF}, 0")
    a("s_mov_b32 s40, 0")

    resc_blocks = []

    def tile(tt, slot, first, tag):
        kv = KV + 16 * tt
        a(mfma(S, kv, Q, NEG))
        a(mfma(S, kv + 4, Q + 4, S))
        a("s_nop 15\ns_nop 3")
        a(f"v_max3_f32 v{MX}, v{S}, v{S + 1}, v{S + 2}")
        for i in range(3, 15, 2):
            a(f"v_max3_f32 v{MX}, v{MX}, v{S + i}, v{S + i + 1}")
        a(f"v_max_f32 v{MX}, v{MX}, v{S + 15}")
        if first:
            a(f"s_branch K2_R{tag}")
        else:
            a(f"v_cmp_lt_f32 vcc, s36, v{MX}")
            a("s_nop 0")
            a(f"s_cbranch_vccnz K2_R{tag}")
        a.label(f"K2_B{tag}")
        for i in range(16):
            a(f"v_exp_f32 v{S + i}, v{S + i}")
        a("s_nop 0")
        for i in range(8):
            a(f"v_cvt_pk_bf16_f32 v{P + i}, v{S + 2 * i}, v{S + 2 * i + 1}")
        a("s_nop 1")
        a(mfma(O, kv + 8, P, O))
        a(mfma(O, kv + 12, P + 4, O))
        resc_blocks.append((tag, first))

    def stage_body(slot, first, tag, wait_n, do_dma):
        a(f"s_waitcnt vmcnt({wait_n})")
        a("s_barrier")
        if do_dma:
            dma((slot + PRE) % NSLOT)
        for tt in range(2):
            for j in range(2):
                a(f"ds_read_b128 {vr(KV + 16 * tt + 4 * j, 4)}, v{RA} offset:{slot * STAGE + tt * 2048 + j * 1024}")
            for j in range(2):
                a(f"ds_read_b128 {vr(KV + 16 * tt + 8 + 4 * j, 4)}, v{RA} offset:{slot * STAGE + 4096 + tt * 2048 + j * 1024}")
        a("s_waitcnt lgkmcnt(4)")
        tile(0, slot, first, tag + "a")
        a("s_waitcnt lgkmcnt(0)")
        tile(1, slot, False, tag + "b")

    for s in range(4):
        stage_body(s, s == 0, f"p{s}", 2 * (PRE - 1), True)
    a.stamp()
    a.label("K2_LOOP")
    for s in range(4):
        stage_body(s, False, f"l{s}", 2 * (PRE - 1), True)
    a("s_add_u32 s40, s40, 1")
    a("s_cmp_lt_u32 s40, 2")
    a("s_cbranch_scc1 K2_LOOP")
    stage_body(0, False, "t0", 2 * (PRE - 1), True)
    stage_body(1, False, "t1", 4, False)
    stage_body(2, False, "t2", 2, False)
    stage_body(3, False, "t3", 0, False)
    a("s_branch K2_FIN")
    for tag, first in resc_blocks:
        a.label(f"K2_R{tag}")
        a(f"v_mov_b32 v{T0}, v{MX}")
        a(f"v_mov_b32 v{T1}, v{MX}")
        a("s_nop 1")
        a(f"v_permlane32_swap_b32 v{T0}, v{T1}")
        a("s_nop 1")
        a(f"v_max_f32 v{T0}, v{T0}, v{T1}")
        if not first:
            a(f"v_max_f32 v{T0}, 0, v{T0}")
        a(f"v_add_f32 v{MREF}, v{MREF}, v{T0}")
        for i in range(16):
            a(f"v_sub_f32 v{S + i}, v{S + i}, v{T0}")
        for i in range(16):
            a(f"v_sub_f32 v{NEG + i}, v{NEG + i}, v{T0}")
        if not first:
            a(f"v_sub_f32 v{T1}, 0, v{T0}")
            a(f"v_exp_f32 v{T1}, v{T1}")
            a("s_nop 0")
            for i in range(16):
                a(f"v_mul_f32 v{O + i}, v{O + i}, v{T1}")
        a(f"s_branch K2_B{tag}")
    a.label("K2_FIN")
    a.stamp()
    a("s_nop 15\ns_nop 7")
    a("s_barrier")
    a("s_lshl_b32 s31, s23, 13")
    a("v_add_u32 v13, s31, v3")
    a("s_cmp_eq_u32 s24, 0")
    a("s_cbranch_scc1 K2_LOW")
    for j in range(4):
        a(f"ds_write_b128 v13, {vr(O + 4 * j, 4)} offset:{j * 1024}")
    a(f"v_mov_b32 v{S}, v{MREF}")
    a(f"ds_write_b128 v13, {vr(S, 4)} offset:4096")
    a("s_waitcnt lgkmcnt(0)")
    a("s_barrier")
    a("s_branch K2_END")
    a.label("K2_LOW")
    a("s_barrier")
    for j in range(4):
        a(f"ds_read_b128 {vr(S + 4 * j, 4)}, v13 offset:{j * 1024}")
    a(f"ds_read_b128 {vr(P, 4)}, v13 offset:4096")
    a("s_waitcnt lgkmcnt(0)")
    a(f"v_max_f32 v{T0}, v{MREF}, v{P}")
    a(f"v_sub_f32 v{T1}, v{MREF}, v{T0}")
    a(f"v_sub_f32 v{MX}, v{P}, v{T0}")
    a(f"v_exp_f32 v{T1}, v{T1}")
    a(f"v_exp_f32 v{MX}, v{MX}")
    a("s_nop 0")
    for i in range(16):
        a(f"v_mul_f32 v{O + i}, v{O + i}, v{T1}")
    for i in range(16):
        a(f"v_fmac_f32 v{O + i}, v{S + i}, v{MX}")
    a(f"v_mov_b32 v{T0}, v{O + 12}")
    a(f"v_mov_b32 v{T1}, v{O + 12}")
    a("s_nop 1")
    a(f"v_permlane32_swap_b32 v{T0}, v{T1}")
    a("s_nop 1")
    a(f"v_rcp_f32 v{T1}, v{T1}")
    a("s_nop 0")
    for i in range(16):
        a(f"v_mul_f32 v{O + i}, v{O + i}, v{T1}")
    for i in range(8):
        a(f"v_cvt_pk_bf16_f32 v{P + i}, v{O + 2 * i}, v{O + 2 * i + 1}")
    a("s_mov_b32 s32, 0\ns_mov_b32 s33, -1")
    a(f"v_cndmask_b32_e64 v{P + 6}, v{P + 6}, 0, s[32:33]")
    a(f"v_cndmask_b32_e64 v{P + 7}, v{P + 7}, 0, s[32:33]")
    a("s_lshl_b32 s25, s21, 2")
    a("s_add_u32 s25, s25, s23")
    a("s_lshl_b32 s25, s25, 4")
    a("s_add_u32 s25, s25, s20")
    a("s_lshl_b32 s25, s25, 11")
    a(f"buffer_store_dwordx4 {vr(P, 4)}, v3, s[16:19], s25 offen")
    a(f"buffer_store_dwordx4 {vr(P + 4, 4)}, v3, s[16:19], s25 offen offset:1024")
    a("s_waitcnt vmcnt(0)")
    a.dump()
    a.label("K2_END")
    a("s_endpgm")
    return kn, a.text(), descriptor(kn, 112), f"grid=(256,1,1) block=(512,1,1) lds={LDS}"


def tr_lane_addr128(a, dst, lane, T, extra_s=None):
    a(f"v_lshrrev_b32 v{T}, 4, v{lane}")
    a(f"v_and_b32 v{T + 1}, 1, v{T}")
    a(f"v_lshrrev_b32 v{T + 2}, 1, v{T}")
    a(f"v_lshrrev_b32 v{T + 3}, 2, v{lane}")
    a(f"v_and_b32 v{T + 3}, 3, v{T + 3}")
    a(f"v_and_b32 v{T + 4}, 3, v{lane}")
    a(f"v_lshlrev_b32 v{T + 5}, 5, v{T + 1}")
    a(f"v_lshl_add_u32 v{T + 5}, v{T + 4}, 3, v{T + 5}")
    if extra_s is not None:
        a(f"v_add_u32 v{T + 5}, s{extra_s}, v{T + 5}")
    a(f"v_lshrrev_b32 v{T + 1}, 1, v{T + 3}")
    a(f"v_lshlrev_b32 v{T + 1}, 6, v{T + 1}")
    a(f"v_xor_b32 v{T + 5}, v{T + 1}, v{T + 5}")
    a(f"v_lshl_add_u32 v{T + 2}, v{T + 2}, 2, v{T + 3}")
    a(f"v_lshl_add_u32 v{dst}, v{T + 2}, 7, v{T + 5}")


def k3():
    kn = "k3_wo_kernel"
    a = Asm()
    header(a, kn)
    LDS = 57 * 1024
    a("s_cmp_ge_u32 s2, 224")
    a("s_cbranch_scc1 K3_END")
    a.stamp()
    a("s_load_dwordx2 s[4:5], s[0:1], 0")
    a("s_load_dwordx2 s[6:7], s[0:1], 16")
    a("s_load_dwordx2 s[8:9], s[0:1], 72")
    a("s_and_b32 s24, s2, 7")
    a("s_lshr_b32 s25, s2, 3")
    a("s_mul_i32 s20, s25, 9363")
    a("s_lshr_b32 s20, s20, 16")
    a("s_mul_i32 s21, s20, 7")
    a("s_sub_u32 s21, s25, s21")
    a("s_lshl_b32 s24, s24, 2")
    a("s_add_u32 s20, s20, s24")
    a("v_lshrrev_b32 v1, 6, v0")
    a("v_and_b32 v2, 63, v0")
    a("s_nop 0")
    a("v_readfirstlane_b32 s22, v1")
    a("s_waitcnt lgkmcnt(0)")
    a.stamp()
    srd(a, 12, 4, 0, X_BYTES)
    srd(a, 16, 6, 0, WO_BYTES)
    srd(a, 64, 8, WS_OF, FRAG_BYTES)
    srd(a, 68, 8, WS_H, H_BYTES)
    a("s_and_b32 s23, s22, 1")
    a("s_lshr_b32 s24, s22, 1")
    a("v_lshrrev_b32 v3, 3, v2")
    a("v_mul_u32_u24 v3, 0x380, v3")
    a("v_lshrrev_b32 v4, 4, v2")
    a("v_and_b32 v4, 1, v4")
    a("v_lshlrev_b32 v4, 2, v4")
    a("v_and_b32 v5, 7, v2")
    a("v_xor_b32 v4, v4, v5")
    a("v_lshl_add_u32 v3, v4, 4, v3")
    a("s_lshl_b32 s25, s21, 7")
    a("v_add_u32 v3, s25, v3")
    a("s_lshl_b32 s26, s22, 10")
    a("s_mul_i32 s27, s22, 0x1c00")
    for jj in range(14):
        a(f"s_add_u32 m0, s26, {jj * 4096}")
        a(f"s_add_u32 s32, s27, {jj * 4 * 7168}")
        a("buffer_load_dwordx4 v3, s[16:19], s32 offen lds")
    a("s_cmp_lg_u32 s22, 0")
    a("s_cbranch_scc1 K3_NOX")
    a(f"s_mov_b32 m0, {56 * 1024}")
    a(f"s_mov_b32 s32, {56 * 7168}")
    a("buffer_load_dwordx4 v3, s[16:19], s32 offen lds")
    a.label("K3_NOX")
    OFR = 64
    a("v_lshlrev_b32 v4, 4, v2")
    a("s_lshl_b32 s28, s20, 1")
    a("s_add_u32 s28, s28, s23")
    a("s_lshl_b32 s28, s28, 15")
    for i in range(32):
        if i % 4 == 0 and i:
            a("s_add_u32 s28, s28, 4096")
        a(f"buffer_load_dwordx4 {vr(OFR + 4 * i, 4)}, v4, s[64:67], s28 offen offset:{(i % 4) * 1024}")
    a("v_and_b32 v5, 31, v2")
    a("v_lshrrev_b32 v6, 5, v2")
    a("v_mul_u32_u24 v5, 0x380, v5")
    a("v_lshl_add_u32 v5, v6, 3, v5")
    a("s_lshl_b32 s29, s20, 1")
    a("s_add_u32 s29, s29, s23")
    a("s_mul_i32 s29, s29, 0x7000")
    a("s_lshl_b32 s30, s21, 7")
    a("s_add_u32 s29, s29, s30")
    a("s_lshl_b32 s30, s24, 6")
    a("s_add_u32 s29, s29, s30")
    XR = 40
    for q in range(4):
        a(f"buffer_load_dwordx2 {vr(XR + 2 * q, 2)}, v5, s[12:15], s29 offen offset:{16 * q}")
    a("s_lshl_b32 s31, s24, 6")
    tr_lane_addr128(a, 8, 2, 10, extra_s=31)
    a("s_waitcnt vmcnt(36)")
    a("s_barrier")
    a.stamp()
    ACC = 16
    WF = 48
    n = 0
    for h in range(16):
        for f in range(2):
            off = (h * 28 + 16 * f) * 128
            w = WF + 4 * (n & 1)
            a(f"ds_read_b64_tr_b16 {vr(w, 2)}, v8 offset:{off}")
            a(f"ds_read_b64_tr_b16 {vr(w + 2, 2)}, v8 offset:{off + 1024}")
            if n == 0:
                pass
            else:
                pw = WF + 4 * ((n - 1) & 1)
                a(f"s_waitcnt vmcnt({4 + 32 - n}) lgkmcnt(2)")
                a(mfma(ACC, pw, OFR + 4 * (n - 1), "0" if n == 1 else ACC))
            n += 1
    a("s_waitcnt vmcnt(0) lgkmcnt(0)")
    a(mfma(ACC, WF + 4, OFR + 4 * 31, ACC))
    a.stamp()
    a("s_nop 15\ns_nop 7")
    for q in range(4):
        a(f"v_lshlrev_b32 v10, 16, v{XR + 2 * q}")
        a(f"v_and_b32 v11, 0xffff0000, v{XR + 2 * q}")
        a(f"v_lshlrev_b32 v12, 16, v{XR + 2 * q + 1}")
        a(f"v_and_b32 v13, 0xffff0000, v{XR + 2 * q + 1}")
        for j in range(4):
            a(f"v_add_f32 v{10 + j}, v{10 + j}, v{ACC + 4 * q + j}")
        a(f"v_cvt_pk_bf16_f32 v{56 + 2 * q}, v10, v11")
        a(f"v_cvt_pk_bf16_f32 v{56 + 2 * q + 1}, v12, v13")
        a(f"buffer_store_dwordx2 {vr(56 + 2 * q, 2)}, v5, s[68:71], s29 offen offset:{16 * q}")
    a("s_waitcnt vmcnt(0)")
    a.dump()
    a.label("K3_END")
    a("s_endpgm")
    return kn, a.text(), descriptor(kn, 192), f"grid=(224,1,1) block=(256,1,1) lds={LDS}"


def k4():
    kn = "k4_ffn1_kernel"
    a = Asm()
    header(a, kn)
    NSLOT, STAGE = 3, 16384
    ALDS = NSLOT * STAGE
    LDS = ALDS + 128 * 896
    a("s_cmp_ge_u32 s2, 224")
    a("s_cbranch_scc1 K4_END")
    a.stamp()
    a("s_load_dwordx2 s[4:5], s[0:1], 32")
    a("s_load_dwordx2 s[6:7], s[0:1], 40")
    a("s_load_dwordx2 s[8:9], s[0:1], 72")
    a("s_and_b32 s24, s2, 7")
    a("s_lshr_b32 s25, s2, 3")
    a("s_mul_i32 s20, s25, 9363")
    a("s_lshr_b32 s20, s20, 16")
    a("s_mul_i32 s21, s20, 7")
    a("s_sub_u32 s21, s25, s21")
    a("s_lshr_b32 s26, s24, 1")
    a("s_lshl_b32 s26, s26, 2")
    a("s_add_u32 s20, s20, s26")
    a("s_and_b32 s26, s24, 1")
    a("s_mul_i32 s26, s26, 7")
    a("s_add_u32 s21, s21, s26")
    a("v_lshrrev_b32 v1, 6, v0")
    a("v_and_b32 v2, 63, v0")
    a("s_nop 0")
    a("v_readfirstlane_b32 s22, v1")
    a("s_waitcnt lgkmcnt(0)")
    a.stamp()
    srd(a, 12, 8, WS_H, H_BYTES)
    srd(a, 16, 4, 0, WG_BYTES)
    srd(a, 64, 6, 0, WG_BYTES)
    srd(a, 68, 8, WS_AF, AF_BYTES)
    a("s_mul_i32 s23, s20, 0x1c000")
    R, Fb, T = 116, 4, 172
    ln_issue(a, 12, 23, R, T)
    D = 184
    a(f"v_lshrrev_b32 v{D}, 4, v2")
    a(f"v_lshlrev_b32 v{D + 1}, 2, v{D}")
    a(f"v_and_b32 v{D + 2}, 15, v2")
    a(f"v_xor_b32 v{D + 1}, v{D + 1}, v{D + 2}")
    a("s_and_b32 s24, s22, 3")
    a("s_lshl_b32 s25, s24, 3")
    a(f"v_add_u32 v{D}, s25, v{D}")
    a(f"v_mul_u32_u24 v{D}, 0xe00, v{D}")
    a(f"v_lshl_add_u32 v{D}, v{D + 1}, 4, v{D}")
    a("s_lshl_b32 s25, s21, 8")
    a(f"v_add_u32 v{D}, s25, v{D}")
    a("s_lshr_b32 s26, s22, 2")
    a("s_lshl_b32 s27, s26, 13")
    a("s_lshl_b32 s25, s24, 11")
    a("s_add_u32 s27, s27, s25")
    a("s_cmp_eq_u32 s26, 0")
    a("s_cselect_b32 s72, s4, s6")
    a("s_cselect_b32 s73, s5, s7")
    a(f"s_mov_b32 s74, 0x{WG_BYTES:x}")
    a("s_mov_b32 s75, 0x00020000")

    def dma_stage(s):
        slot = s % NSLOT
        for i in range(2):
            a(f"s_add_u32 m0, s27, {slot * STAGE + i * 1024}")
            a(f"s_mov_b32 s36, 0x{(s * 32 + 4 * i) * 3584:x}")
            a(f"buffer_load_dwordx4 v{D}, s[72:75], s36 offen lds")

    PRE = 2
    for s in range(PRE):
        dma_stage(s)
    ln_compute(a, R, Fb, T, ALDS, PRE * 2)
    a.stamp()
    XA = 4
    a_frag_addr(a, XA, 2, 10, ALDS)
    a("s_and_b32 s29, s22, 1")
    a("s_mul_i32 s29, s29, 0xe000")
    for j in range(4):
        a(f"v_add_u32 v{XA + j}, s29, v{XA + j}")
    WA = 8
    a("v_lshrrev_b32 v10, 4, v2")
    a("v_and_b32 v11, 1, v10")
    a("v_lshrrev_b32 v12, 1, v10")
    a("v_lshrrev_b32 v13, 2, v2")
    a("v_and_b32 v13, 3, v13")
    a("v_and_b32 v14, 3, v2")
    a("v_lshlrev_b32 v15, 5, v11")
    a("v_lshl_add_u32 v15, v14, 3, v15")
    a("s_lshr_b32 s30, s22, 1")
    a("v_xor_b32 v16, s30, v13")
    a("v_lshl_add_u32 v15, v16, 6, v15")
    a("v_lshl_add_u32 v17, v12, 3, v13")
    a(f"v_lshl_add_u32 v{WA}, v17, 8, v15")
    G0, G1, U0, U1 = 20, 36, 52, 68
    XF = 84
    WF = 100
    first = True
    for s in range(14):
        outstanding = min(13, s + PRE - 1) - s
        a(f"s_waitcnt vmcnt({outstanding * 2}) lgkmcnt(0)")
        a("s_barrier")
        if s + PRE < 14:
            dma_stage(s + PRE)
        slot = s % NSLOT
        for kk in range(2):
            ks = 2 * s + kk
            for sec in range(2):
                off = slot * STAGE + sec * 8192 + kk * 4096
                a(f"ds_read_b64_tr_b16 {vr(WF + 8 * kk + 4 * sec, 2)}, v{WA} offset:{off}")
                a(f"ds_read_b64_tr_b16 {vr(WF + 8 * kk + 4 * sec + 2, 2)}, v{WA} offset:{off + 1024}")
            for mt in range(2):
                a(f"ds_read_b128 {vr(XF + 8 * kk + 4 * mt, 4)}, v{XA + (ks & 3)} offset:{(ks >> 2) * 128 + mt * 28672}")
        for kk in range(2):
            a(f"s_waitcnt lgkmcnt({6 if kk == 0 else 0})")
            wg, wu = WF + 8 * kk, WF + 8 * kk + 4
            x0, x1 = XF + 8 * kk, XF + 8 * kk + 4
            a(mfma(G0, wg, x0, "0" if first else G0))
            a(mfma(U0, wu, x0, "0" if first else U0))
            a(mfma(G1, wg, x1, "0" if first else G1))
            a(mfma(U1, wu, x1, "0" if first else U1))
            first = False
    a.stamp()
    a("s_nop 15\ns_nop 7")
    k = 2.0 * math.sqrt(2.0 / math.pi) * math.log2(math.e)
    a(f"s_mov_b32 s36, 0x{f2u(-k):08x}")
    a(f"s_mov_b32 s37, 0x{f2u(-k * 0.044715):08x}")
    a("v_lshlrev_b32 v9, 4, v2")
    a("s_lshl_b32 s24, s20, 2")
    a("s_and_b32 s25, s22, 1")
    a("s_lshl_b32 s25, s25, 1")
    a("s_add_u32 s24, s24, s25")
    a("s_mul_i32 s24, s24, 112")
    a("s_lshl_b32 s25, s21, 3")
    a("s_add_u32 s24, s24, s25")
    a("s_lshr_b32 s25, s22, 1")
    a("s_lshl_b32 s25, s25, 1")
    a("s_add_u32 s24, s24, s25")
    a("s_lshl_b32 s24, s24, 10")
    for t, (G, U) in enumerate(((G0, U0), (G1, U1))):
        for i in range(16):
            x = 84 + i
            a(f"v_mul_f32 v{x}, v{G + i}, v{G + i}")
            a(f"v_mov_b32 v{100 + i}, s36")
            a(f"v_fmac_f32 v{100 + i}, s37, v{x}")
            a(f"v_mul_f32 v{x}, v{100 + i}, v{G + i}")
            a(f"v_exp_f32 v{x}, v{x}")
            a(f"v_mul_f32 v{U + i}, v{U + i}, v{G + i}")
            a(f"v_add_f32 v{x}, 1.0, v{x}")
            a(f"v_rcp_f32 v{x}, v{x}")
            a("s_nop 0")
            a(f"v_mul_f32 v{U + i}, v{U + i}, v{x}")
        for i in range(8):
            a(f"v_cvt_pk_bf16_f32 v{G + i}, v{U + 2 * i}, v{U + 2 * i + 1}")
        if t == 1:
            a(f"s_add_u32 s24, s24, {112 * 1024}")
        a(f"buffer_store_dwordx4 {vr(G, 4)}, v9, s[68:71], s24 offen")
        a(f"buffer_store_dwordx4 {vr(G + 4, 4)}, v9, s[68:71], s24 offen offset:1024")
    a("s_waitcnt vmcnt(0)")
    a.dump()
    a.label("K4_END")
    a("s_endpgm")
    return kn, a.text(), descriptor(kn, 192), f"grid=(224,1,1) block=(512,1,1) lds={LDS}"


def k5():
    kn = "k5_down_kernel"
    a = Asm()
    header(a, kn)
    NSL = 8
    LDS = 8 * 16384
    a("s_cmp_ge_u32 s2, 224")
    a("s_cbranch_scc1 K5_END")
    a.stamp()
    a("s_load_dwordx2 s[4:5], s[0:1], 48")
    a("s_load_dwordx2 s[6:7], s[0:1], 56")
    a("s_load_dwordx2 s[8:9], s[0:1], 72")
    a("s_and_b32 s24, s2, 7")
    a("s_lshr_b32 s25, s2, 3")
    a("s_mul_i32 s20, s25, 9363")
    a("s_lshr_b32 s20, s20, 16")
    a("s_mul_i32 s21, s20, 7")
    a("s_sub_u32 s21, s25, s21")
    a("s_lshl_b32 s24, s24, 2")
    a("s_add_u32 s20, s20, s24")
    a("v_lshrrev_b32 v1, 6, v0")
    a("v_and_b32 v2, 63, v0")
    a("s_nop 0")
    a("v_readfirstlane_b32 s22, v1")
    a("s_waitcnt lgkmcnt(0)")
    a.stamp()
    srd(a, 12, 4, 0, WD_BYTES)
    srd(a, 16, 6, 0, H_BYTES)
    srd(a, 64, 8, WS_AF, AF_BYTES)
    srd(a, 68, 8, WS_H, H_BYTES)
    a("v_lshrrev_b32 v3, 3, v2")
    a("v_mul_u32_u24 v3, 0x380, v3")
    a("v_lshrrev_b32 v4, 4, v2")
    a("v_and_b32 v4, 1, v4")
    a("v_lshlrev_b32 v4, 2, v4")
    a("v_and_b32 v5, 7, v2")
    a("v_xor_b32 v4, v4, v5")
    a("v_lshl_add_u32 v3, v4, 4, v3")
    a("s_lshl_b32 s25, s21, 7")
    a("v_add_u32 v3, s25, v3")
    a("s_lshl_b32 s26, s22, 14")
    a(f"s_mul_i32 s27, s22, {224 * 896}")
    a("v_lshlrev_b32 v4, 4, v2")
    a("s_mul_i32 s28, s20, 224")
    a("s_mul_i32 s29, s22, 14")
    a("s_add_u32 s28, s28, s29")
    a("s_lshl_b32 s28, s28, 10")
    a(f"s_add_u32 s29, s28, {112 * 1024}")
    BF = 96

    def dma(s):
        slot = s % NSL
        for i in range(2):
            a(f"s_add_u32 m0, s26, {slot * 2048 + i * 1024}")
            a(f"s_add_u32 s32, s27, {(16 * s + 8 * i) * 896}")
            a("buffer_load_dwordx4 v3, s[12:15], s32 offen lds")

    def bload(s):
        so, io = divmod(s * 1024, 4096)
        if s and io == 0:
            a("s_add_u32 s28, s28, 4096")
            a("s_add_u32 s29, s29, 4096")
        a(f"buffer_load_dwordx4 {vr(BF + 8 * s, 4)}, v4, s[64:67], s28 offen offset:{io}")
        a(f"buffer_load_dwordx4 {vr(BF + 8 * s + 4, 4)}, v4, s[64:67], s29 offen offset:{io}")

    order = []
    for s in range(14):
        if s < NSL:
            dma(s)
            order.append(("d", s, 2))
        bload(s)
        order.append(("b", s, 2))
    tr_lane_addr128(a, 8, 2, 10)
    a("v_add_u32 v8, s26, v8")
    a("v_xor_b32 v9, 64, v8")
    ACC = 16
    WF = 80
    first = True

    def outstanding_after(kind, s):
        idx = max(i for i, o in enumerate(order) if o[0] == kind and o[1] == s)
        return sum(o[2] for o in order[idx + 1:])

    for s in range(14):
        slot = s % NSL
        n = min(outstanding_after("d", s), outstanding_after("b", s))
        a(f"s_waitcnt vmcnt({n})")
        if s in (0, 7):
            a.stamp()
        w = WF + 8 * (s & 1)
        for nt in range(2):
            a(f"ds_read_b64_tr_b16 {vr(w + 4 * nt, 2)}, v{8 + nt} offset:{slot * 2048}")
            a(f"ds_read_b64_tr_b16 {vr(w + 4 * nt + 2, 2)}, v{8 + nt} offset:{slot * 2048 + 1024}")
        a("s_waitcnt lgkmcnt(0)")
        if s + NSL < 14:
            dma(s + NSL)
            order.append(("d", s + NSL, 2))
        for mt in range(2):
            for nt in range(2):
                acc = ACC + 16 * (2 * mt + nt)
                a(mfma(acc, w + 4 * nt, BF + 8 * s + 4 * mt, "0" if first else acc))
        first = False
    a.stamp()
    a("s_nop 15\ns_nop 7")
    a("v_lshlrev_b32 v10, 4, v2")
    a("v_add_u32 v10, s26, v10")
    for q in range(16):
        a(f"ds_write_b128 v10, {vr(ACC + 4 * q, 4)} offset:{q * 1024}")
    a("v_and_b32 v5, 31, v2")
    a("v_lshrrev_b32 v6, 5, v2")
    a("v_mul_u32_u24 v5, 0x380, v5")
    a("v_lshl_add_u32 v5, v6, 3, v5")
    a("s_lshr_b32 s30, s22, 2")
    a("s_lshl_b32 s31, s20, 1")
    a("s_add_u32 s31, s31, s30")
    a("s_mul_i32 s31, s31, 0x7000")
    a("s_lshl_b32 s30, s21, 7")
    a("s_add_u32 s31, s31, s30")
    a("s_lshr_b32 s30, s22, 1")
    a("s_and_b32 s30, s30, 1")
    a("s_lshl_b32 s30, s30, 6")
    a("s_add_u32 s31, s31, s30")
    a("s_and_b32 s30, s22, 1")
    a("s_lshl_b32 s30, s30, 5")
    a("s_add_u32 s31, s31, s30")
    a("buffer_load_dwordx2 v[12:13], v5, s[68:71], s31 offen")
    a("buffer_load_dwordx2 v[14:15], v5, s[68:71], s31 offen offset:16")
    a("s_waitcnt lgkmcnt(0)")
    a("s_barrier")
    a("v_lshlrev_b32 v10, 4, v2")
    a("s_lshl_b32 s30, s22, 11")
    a("v_add_u32 v10, s30, v10")
    a("v_add_u32 v11, 0x10000, v10")
    for ww in range(8):
        for e in range(2):
            a(f"ds_read_b128 {vr(96 + 8 * ww + 4 * e, 4)}, v{10 + (ww >> 2)} offset:{(ww & 3) * 16384 + e * 1024}")
    a("s_waitcnt vmcnt(0)")
    for e in range(2):
        a(f"v_lshlrev_b32 v{16 + 4 * e}, 16, v{12 + 2 * e}")
        a(f"v_and_b32 v{17 + 4 * e}, 0xffff0000, v{12 + 2 * e}")
        a(f"v_lshlrev_b32 v{18 + 4 * e}, 16, v{13 + 2 * e}")
        a(f"v_and_b32 v{19 + 4 * e}, 0xffff0000, v{13 + 2 * e}")
    for ww in range(1, 8):
        a(f"s_waitcnt lgkmcnt({min(15, 2 * (7 - ww))})")
        for e in range(2):
            for j in range(4):
                a(f"v_add_f32 v{96 + 4 * e + j}, v{96 + 4 * e + j}, v{96 + 8 * ww + 4 * e + j}")
    for e in range(2):
        for j in range(4):
            a(f"v_add_f32 v{16 + 4 * e + j}, v{16 + 4 * e + j}, v{96 + 4 * e + j}")
        a(f"v_cvt_pk_bf16_f32 v{24 + 2 * e}, v{16 + 4 * e}, v{17 + 4 * e}")
        a(f"v_cvt_pk_bf16_f32 v{25 + 2 * e}, v{18 + 4 * e}, v{19 + 4 * e}")
        a(f"buffer_store_dwordx2 {vr(24 + 2 * e, 2)}, v5, s[16:19], s31 offen offset:{16 * e}")
    a("s_waitcnt vmcnt(0)")
    a.dump()
    a.label("K5_END")
    a("s_endpgm")
    return kn, a.text(), descriptor(kn, 208), f"grid=(224,1,1) block=(512,1,1) lds={LDS}"


def build(kernels):
    ref = open("cdna_kernels/" + NAME + ".s.ref").read()
    hdr = []
    for line in ref.split("\n"):
        if line.startswith("; @launch"):
            break
        hdr.append(line)
    out = "\n".join(hdr) + "\n"
    ks = [k() for k in kernels]
    for kn, text, desc, launch in ks:
        out += f"; @launch kernel={kn} {launch}\n"
    out += '.amdgcn_target "amdgcn-amd-amdhsa--gfx950"\n.text\n'
    for kn, text, desc, launch in ks:
        out += text
    out += '.section .rodata,"a"\n'
    for kn, text, desc, launch in ks:
        out += ".p2align 6\n" + desc
    return out


if __name__ == "__main__":
    if "--prof" in sys.argv:
        sys.argv.remove("--prof")
        PROFILE = True
    out = build([k1, k2, k3, k4, k5])
    path = sys.argv[1] if len(sys.argv) > 1 else "cdna_kernels/" + NAME + ".s"
    open(path, "w").write(out)
    print("wrote", path, len(out))
```
